```python
import torch

def _softmax(x, axis=-1):
    return torch.softmax(x, dim=axis)
def _gelu(x):
    return torch.nn.functional.gelu(x, approximate="tanh")
def _silu(x):
    return torch.nn.functional.silu(x)
def _sigmoid(x):
    return torch.sigmoid(x)
def _layernorm(x, axis=-1, eps=1e-5):
    m = x.mean(dim=axis, keepdim=True)
    v = x.var(dim=axis, keepdim=True, unbiased=False)
    return (x - m) / torch.sqrt(v + eps)
def _scatter_add(tgt, idx, src, axis=0):
    return tgt.clone().index_add_(axis, idx, src)
def _segment_sum(src, seg, n):
    out = torch.zeros((n,) + src.shape[1:], dtype=src.dtype)
    return out.index_add_(0, seg, src)
def _pad(x, pw):
    flat = tuple(v for pair in reversed(pw) for v in pair)
    return torch.nn.functional.pad(x, flat)

kernel_name = 'interleave_layers__sliding_block_cached__sliding_block_cached__decode'

def setup_inputs():

    _w = (lambda a: (lambda t: t.to(torch.bfloat16) if t.is_floating_point() else t)(torch.as_tensor(a)))
    def _A_setup():
        B, Sq, D = 4, 1, 512
        Hq, Hkv, Sk, Dh = 32, 8, 4096, 128
        assert Hq % Hkv == 0, (Hq, Hkv)
        return {
            "x": _w((lambda *s: torch.randn(*s, dtype=torch.bfloat16) * 0.05)(B, Sq, D)),
            "k_cache": _w((lambda *s: torch.randn(*s, dtype=torch.bfloat16) * 0.8)(B, Hkv, Sk, Dh)),
            "v_cache": _w((lambda *s: torch.randn(*s, dtype=torch.bfloat16) * 3.2)(B, Hkv, Sk, Dh)),
            "wq": _w((lambda *s: torch.randn(*s, dtype=torch.bfloat16) * 0.8)(D, Hq * Dh) * (D ** -0.5)),
            "wo": _w((lambda *s: torch.randn(*s, dtype=torch.bfloat16) * 3.2)(Hq * Dh, D) * ((Hq * Dh) ** -0.5)),
        }
    _A_in = _A_setup()

    def _B_setup():
        B, Sq, D = 4, 1, 512
        Hq, Hkv, Sk, Dh = 32, 8, 4096, 128
        assert Hq % Hkv == 0, (Hq, Hkv)
        return {
            "x": _w((lambda *s: torch.randn(*s, dtype=torch.bfloat16) * 0.05)(B, Sq, D)),
            "k_cache": _w((lambda *s: torch.randn(*s, dtype=torch.bfloat16) * 1.6)(B, Hkv, Sk, Dh)),
            "v_cache": _w((lambda *s: torch.randn(*s, dtype=torch.bfloat16) * 1.6)(B, Hkv, Sk, Dh)),
            "wq": _w((lambda *s: torch.randn(*s, dtype=torch.bfloat16) * 1.6)(D, Hq * Dh) * (D ** -0.5)),
            "wo": _w((lambda *s: torch.randn(*s, dtype=torch.bfloat16) * 1.6)(Hq * Dh, D) * ((Hq * Dh) ** -0.5)),
        }
    _B_in = _B_setup()

    return {
        "A_x": _A_in["x"],
        "A_k_cache": _A_in["k_cache"],
        "A_v_cache": _A_in["v_cache"],
        "A_wq": _A_in["wq"],
        "A_wo": _A_in["wo"],
        "B_x": _B_in["x"],
        "B_k_cache": _B_in["k_cache"],
        "B_v_cache": _B_in["v_cache"],
        "B_wq": _B_in["wq"],
        "B_wo": _B_in["wo"],
    }

def reference(A_x, A_k_cache, A_v_cache, A_wq, A_wo, B_x, B_k_cache, B_v_cache, B_wq, B_wo):
    def _A_ref(x, k_cache, v_cache, wq, wo):
        B, Sq, D = x.shape
        Hq, Dh = 32, 128
        Hkv, Sk = k_cache.shape[1], k_cache.shape[2]
        W = min(4096, max(256, Sk // 4))
        rep = Hq // Hkv
        q = (lambda x, *d: x.permute(*d))((x @ wq).reshape(B, Sq, Hq, Dh), 0, 2, 1, 3)
        k = (lambda x, n, axis: torch.repeat_interleave(x, n, dim=axis))(k_cache[:, :, Sk - W:, :], rep, axis=1)
        v = (lambda x, n, axis: torch.repeat_interleave(x, n, dim=axis))(v_cache[:, :, Sk - W:, :], rep, axis=1)
        scores = torch.einsum("bhqd,bhkd->bhqk", q, k) * (Dh ** -0.5)
        p = _softmax(scores, axis=-1)
        o = torch.einsum("bhqk,bhkd->bhqd", p, v)
        return (lambda x, *d: x.permute(*d))(o, 0, 2, 1, 3).reshape(B, Sq, Hq * Dh) @ wo

    def _B_ref(x, k_cache, v_cache, wq, wo):
        B, Sq, D = x.shape
        Hq, Dh = 32, 128
        Hkv, Sk = k_cache.shape[1], k_cache.shape[2]
        W = min(4096, max(256, Sk // 4))
        rep = Hq // Hkv
        q = (lambda x, *d: x.permute(*d))((x @ wq).reshape(B, Sq, Hq, Dh), 0, 2, 1, 3)
        k = (lambda x, n, axis: torch.repeat_interleave(x, n, dim=axis))(k_cache[:, :, Sk - W:, :], rep, axis=1)
        v = (lambda x, n, axis: torch.repeat_interleave(x, n, dim=axis))(v_cache[:, :, Sk - W:, :], rep, axis=1)
        scores = torch.einsum("bhqd,bhkd->bhqk", q, k) * (Dh ** -0.5)
        p = _softmax(scores, axis=-1)
        o = torch.einsum("bhqk,bhkd->bhqd", p, v)
        return (lambda x, *d: x.permute(*d))(o, 0, 2, 1, 3).reshape(B, Sq, Hq * Dh) @ wo

    x = A_x
    x = x + _A_ref(_layernorm(x, axis=-1), A_k_cache, A_v_cache, A_wq, A_wo)
    x = x + _B_ref(_layernorm(x, axis=-1), B_k_cache, B_v_cache, B_wq, B_wo)
    x = x + _A_ref(_layernorm(x, axis=-1), A_k_cache, A_v_cache, A_wq, A_wo)
    x = x + _B_ref(_layernorm(x, axis=-1), B_k_cache, B_v_cache, B_wq, B_wo)
    return x
```

```python
class Asm:
    def __init__(self):
        self.lines = []
        self._lbl = 0
    def __call__(self, s=""):
        for l in s.split("\n"):
            self.lines.append("    " + l.strip() if l.strip() and not l.strip().endswith(":") else l.strip())
    def label(self, name):
        self.lines.append(name + ":")
    def newlabel(self, base="L"):
        self._lbl += 1
        return f"{base}_{self._lbl}"
    def c(self, s):
        self.lines.append("    ; " + s)
    def text(self):
        return "\n".join(self.lines) + "\n"

def vr(a, n=1):
    return f"v{a}" if n == 1 else f"v[{a}:{a+n-1}]"
def ar(a, n=1):
    return f"a{a}" if n == 1 else f"a[{a}:{a+n-1}]"
def sr(a, n=1):
    return f"s{a}" if n == 1 else f"s[{a}:{a+n-1}]"

def kernel_wrap(name, body, vgpr, sgpr, accum, kernarg, header=""):
    return f"""{header}
.amdgcn_target "amdgcn-amd-amdhsa--gfx950"
.text
.globl {name}
.p2align 8
.type {name},@function
{name}:
{body}
.section .rodata,"a"
.p2align 6
.amdhsa_kernel {name}
  .amdhsa_next_free_vgpr {vgpr}
  .amdhsa_next_free_sgpr {sgpr}
  .amdhsa_accum_offset {accum}
  .amdhsa_group_segment_fixed_size 0
  .amdhsa_kernarg_size {kernarg}
  .amdhsa_user_sgpr_count 2
  .amdhsa_user_sgpr_kernarg_segment_ptr 1
  .amdhsa_system_sgpr_workgroup_id_x 1
.end_amdhsa_kernel
"""
```

```python
import re
TRANS = ("v_exp_f32","v_log_f32","v_rcp_f32","v_rsq_f32","v_sqrt_f32","v_sin_f32","v_cos_f32","v_rcp_iflag_f32")
_reg = re.compile(r"\b([vsa])\[(\d+):(\d+)\]|\b([vsa])(\d+)\b|\b(vcc_lo|vcc_hi|vcc|exec_lo|exec_hi|exec|m0|scc)\b")
def regs_of(op):
    out = set()
    for m in _reg.finditer(op):
        if m.group(1):
            for i in range(int(m.group(2)), int(m.group(3))+1): out.add(m.group(1)+str(i))
        elif m.group(4):
            out.add(m.group(4)+m.group(5))
        else:
            n = m.group(6)
            if n.startswith("vcc"): out.add("vcc")
            elif n.startswith("exec"): out.add("exec")
            else: out.add(n)
    return out
def split_ops(rest):
    ops=[];cur="";depth=0
    for ch in rest:
        if ch=='[': depth+=1
        if ch==']': depth-=1
        if ch==',' and depth==0:
            ops.append(cur.strip());cur=""
        else: cur+=ch
    if cur.strip(): ops.append(cur.strip())
    return ops
class I:
    pass
def parse(line):
    s = line.split(";")[0].strip()
    if not s or s.endswith(":") or s.startswith("."): return None
    p = s.split(None,1)
    mn = p[0]; rest = p[1] if len(p)>1 else ""
    ops = split_ops(rest)
    i = I(); i.mn=mn; i.text=s
    ops2=[]
    for o in ops:
        ops2.append(o.split()[0] if o.split() else o)
    i.mfma = mn.startswith("v_mfma")
    i.valu = mn.startswith("v_") and not i.mfma
    i.trans = mn.replace("_e32","").replace("_e64","") in TRANS
    i.dpp = "_dpp" in mn
    i.permlane = mn.startswith("v_permlane")
    i.rdlane = mn.startswith("v_readlane") or mn.startswith("v_readfirstlane") or mn.startswith("v_writelane")
    i.vmem = mn.startswith("buffer_") or mn.startswith("global_")
    i.ds = mn.startswith("ds_")
    i.salu = mn.startswith("s_")
    i.lds_dma = i.vmem and re.search(r"\blds\b", s) is not None
    i.w=set(); i.r=set(); i.srcC=set(); i.ab=set(); i.stdata=set()
    R=[regs_of(o) for o in ops2]
    if i.mfma:
        i.w=R[0]; i.ab=R[1]|R[2]; i.srcC=R[3] if len(R)>3 else set(); i.r=i.ab|i.srcC
    elif i.valu:
        i.w=set(R[0]);
        for r in R[1:]: i.r|=r
        if mn.startswith(("v_fmac","v_mac","v_dot2c","v_writelane")): i.r|=R[0]
        if i.permlane: i.w=R[0]|R[1]; i.r=R[0]|R[1]
        if mn.startswith(("v_add_co","v_sub_co","v_addc_co","v_subb_co")): i.w|=R[1]
        if mn.startswith("v_cndmask") and len(R)==3: i.r.add("vcc")
        if i.dpp: i.r|=R[0]
    elif i.vmem:
        if "store" in mn or "atomic" in mn:
            for r in R: i.r|=r
            if mn.startswith("buffer_"): d=R[0]
            else: d=R[1]
            if mn.endswith("x4") or mn.endswith("x3"): i.stdata=d
        elif i.lds_dma:
            for r in R: i.r|=r
            i.r.add("m0")
        else:
            i.w=R[0]
            for r in R[1:]: i.r|=r
    elif i.ds:
        if "write" in mn or mn.startswith("ds_add"):
            for r in R: i.r|=r
        else:
            i.w=R[0]
            for r in R[1:]: i.r|=r
    elif i.salu:
        if mn.startswith(("s_cmp","s_cbranch","s_branch","s_waitcnt","s_nop","s_barrier","s_setprio","s_sleep","s_endpgm","s_bitcmp")):
            for r in R: i.r|=r
        else:
            if R: i.w=R[0]
            for r in R[1:]: i.r|=r
    i.ws = 1
    if mn=="s_nop": i.ws = int(ops[0],0)+1
    return i
def isv(r): return r[0] in "va" and r[1:].isdigit()
def iss(r): return (r[0]=="s" and r[1:].isdigit()) or r=="vcc"
def need(p, c):
    n=0
    if p.valu:
        vw={r for r in p.w if isv(r)}; sw={r for r in p.w if iss(r)}
        if c.mfma and vw & c.r: n=max(n,2)
        if c.valu and c.dpp and vw & c.r: n=max(n,2)
        if c.permlane and vw & c.r: n=max(n,2)
        if c.rdlane and vw & c.r: n=max(n,1)
        if p.trans and (c.valu and not c.trans or c.mfma or c.vmem or c.ds) and vw & c.r: n=max(n,1)
        if sw & c.r:
            if c.rdlane: n=max(n,4)
            elif c.valu or c.mfma: n=max(n,2)
            elif c.vmem: n=max(n,5)
            elif c.salu: n=max(n,1)
        if "exec" in p.w: n=max(n,5)
    if p.mfma:
        if c.mfma:
            if p.w & c.ab: n=max(n,8)
            if p.w & c.srcC and p.w!=c.srcC: n=max(n,6)
            if p.w & c.w and p.w!=c.w: n=max(n,6)
            if p.w & c.w and not (p.w & c.srcC): n=max(n,1)
        else:
            if p.w & (c.r|c.w): n=max(n,8)
            if c.valu and p.srcC & c.w: n=max(n,3)
    if p.salu and "m0" in p.w and (c.lds_dma): n=max(n,1)
    if p.stdata and (p.stdata & c.w): n=max(n,2)
    return n
def run(lines):
    out=[]; hist=[]
    for line in lines:
        ins=parse(line)
        if ins is None:
            out.append(line); continue
        req=0
        for p,age in hist:
            k=need(p,ins)-age
            if k>req: req=k
        if req>0:
            out.append(f"    s_nop {req-1}")
            for h in hist: h[1]+=req
        out.append(line)
        for h in hist: h[1]+=ins.ws
        hist=[h for h in hist if h[1]<12]
        hist.append([ins,0])
    return out
```

```python
import sys, struct, argparse
sys.path.insert(0, 'gen')
from asmlib import *
import hazard

NAME = "interleave_layers__sliding_block_cached__sliding_block_cached__decode"
def f2u(x): return struct.unpack("<I", struct.pack("<f", x))[0]

class Cfg:
    FAST = True
    ROUND_S = True
    PROF = False
    LOADMOD = ""
    SPIN = 1 << 15

KL = 0
XL = 0x10000
QL = 0x10100
OL = 0x10500
ML = 0x10900
MODE = 0x10980
RED = 0x10A00
ORED = 0x11200
TRASH = 0x13200
LDS_SIZE = 0x13600
EPOCH = 0
HS = 0x1000
PROFB = 0x40000
LS = 0x200000
def LB(l): return LS * (l + 1)
QB, OB, CSB, AUXQ, AUXO, XB = 0, 0x80000, 0x100000, 0x180000, 0x190000, 0x1A0000
WS_SIZE = 268435456
sG, sB, sS, sWV, sTY, sGI, sMODE, sLIM = 4, 5, 6, 7, 8, 9, 10, 11
SWS = 12
SWQ, SK, SV, SWO = 16, 20, 24, 28
sPTR = 32
sWSP, sOUTP, sXP = 40, 42, 44
sSELLO, sSELHI = 46, 47
sMODD, sMHI = 48, 50
sOFF, sCNT, sTAG, sT0, sT1 = 52, 53, 54, 55, 56
sM2 = 58
sSCALE, sLOG2E = 60, 61
sXCC = 62
sPROF = 64
(aXf, aQst, aKf, aQf, aOW, aMw, aLw, aG, aAo, aAq, aPw, aOf, aRw,
 aXg, aXl, aORr, aMLr, aOst, aAost, aRr, aXst, cs0, cs1) = range(1, 24)
t0, t1, t2, t3, t4, t5, t6, t7 = range(24, 32)
S1 = 32
def Z(i): return 64 + 32 * i
WQ0, WQ1, VF, WO0, WO1 = Z(0), Z(1), Z(2), Z(3), Z(4)
DPPF = "row_mask:0xf bank_mask:0xf"

class Gen:
    def __init__(self, cfg):
        self.a = Asm(); self.cfg = cfg; self.nstamp = 0

    def stamp(self, idx):
        if not self.cfg.PROF: return
        a = self.a
        a(f"s_memtime s[{sT0+43}:{sT0+44}]")
        a("s_waitcnt lgkmcnt(0)")
        a(f"s_mov_b32 s{sPROF+idx}, s98")

    def store(self, instr, scope):
        a = self.a
        if scope == 'dev' or not self.cfg.FAST:
            a(instr + " sc1"); return
        l1 = a.newlabel("Lst"); l2 = a.newlabel("Lst")
        a(f"s_cmp_eq_u32 s{sMODE}, 0")
        a(f"s_cbranch_scc1 {l1}")
        a(instr)
        a(f"s_branch {l2}")
        a.label(l1)
        a(instr + " sc1")
        a.label(l2)

    def poll(self, loads, regs, tmp):
        a = self.a
        L = a.newlabel("Lp"); D = a.newlabel("Lpd")
        a(f"s_mov_b32 s{sCNT}, 0")
        a("s_setprio 0")
        a.label(L)
        for x in loads: a(x)
        a("s_waitcnt vmcnt(0)")
        rs = list(regs)
        if len(rs) == 2:
            a(f"v_max_u32 v{tmp}, v{rs[0]}, v{rs[1]}")
        else:
            a(f"v_max3_u32 v{tmp}, v{rs[0]}, v{rs[1]}, v{rs[2]}")
            rs = rs[3:]
            while len(rs) >= 2:
                a(f"v_max3_u32 v{tmp}, v{tmp}, v{rs[0]}, v{rs[1]}"); rs = rs[2:]
            if rs: a(f"v_max_u32 v{tmp}, v{tmp}, v{rs[0]}")
        a(f"v_cmp_eq_u32 vcc, -1, v{tmp}")
        a(f"s_cbranch_vccz {D}")
        a(f"s_add_u32 s{sCNT}, s{sCNT}, 1")
        a(f"s_cmp_lt_u32 s{sCNT}, s{sLIM}")
        a(f"s_cbranch_scc1 {L}")
        a(f"s_mov_b32 s{sLIM}, 0")
        a.label(D)
        a("s_setprio 2")

    def bf16r(self, v, tmp):
        self.a(f"v_cvt_pk_bf16_f32 v{tmp}, v{v}, v{v}")
        self.a(f"v_lshlrev_b32 v{v}, 16, v{tmp}")

    def red8(self, op, v):
        a = self.a
        a(f"{op}_dpp v{v}, v{v}, v{v} quad_perm:[1,0,3,2] {DPPF}")
        a(f"{op}_dpp v{v}, v{v}, v{v} quad_perm:[2,3,0,1] {DPPF}")
        a(f"{op}_dpp v{v}, v{v}, v{v} row_half_mirror {DPPF}")
    def redrows(self, op, v, tmp):
        a = self.a
        a(f"v_mov_b32 v{tmp}, v{v}")
        a(f"v_permlane16_swap_b32 v{v}, v{tmp}")
        a(f"{op} v{v}, v{v}, v{tmp}")
        a(f"v_mov_b32 v{tmp}, v{v}")
        a(f"v_permlane32_swap_b32 v{v}, v{tmp}")
        a(f"{op} v{v}, v{v}, v{tmp}")
    def red64(self, op, v, tmp):
        self.red8(op, v)
        self.a(f"{op}_dpp v{v}, v{v}, v{v} row_mirror {DPPF}")
        self.redrows(op, v, tmp)

    def prologue(self):
        a = self.a
        a(f"""
        s_cmp_ge_u32 s2, 256
        s_cbranch_scc1 L_end
        v_lshrrev_b32 v{t0}, 6, v0
        s_load_dwordx2 s[{sWSP}:{sWSP+1}], s[0:1], 96
        v_readfirstlane_b32 s3, v{t0}
        s_load_dwordx2 s[{sXP}:{sXP+1}], s[0:1], 0
        s_load_dwordx2 s[{sOUTP}:{sOUTP+1}], s[0:1], 80
        s_lshr_b32 s{sTY}, s3, 2
        s_and_b32 s{sWV}, s3, 3
        s_mul_i32 s3, s{sTY}, 40
        s_add_u32 s3, s3, 8
        s_load_dwordx8 s[{sPTR}:{sPTR+7}], s[0:1], s3
        """)
        self.stamp(0)
        a(f"""
        s_setprio 2
        v_and_b32 v0, 63, v0
        s_and_b32 s{sG}, s2, 7
        s_lshr_b32 s3, s2, 3
        s_and_b32 s{sS}, s3, 7
        s_lshr_b32 s{sB}, s3, 3
        s_lshl_b32 s{sGI}, s{sB}, 3
        s_add_u32 s{sGI}, s{sGI}, s{sG}
        s_mov_b32 s{sMODE}, 0
        s_mov_b32 s{sLIM}, {self.cfg.SPIN}
        s_mov_b32 s{sSELLO}, 0x05040100
        s_mov_b32 s{sSELHI}, 0x07060302
        s_mov_b32 s{sMODD}, 0xffff0000
        s_mov_b32 s{sMODD+1}, 0xffff0000
        s_mov_b32 s{sMHI}, 0
        s_mov_b32 s{sMHI+1}, -1
        s_mov_b32 s{sSCALE}, {hex(f2u(128 ** -0.5))}
        s_mov_b32 s{sLOG2E}, {hex(f2u(1.4426950408889634))}
        s_getreg_b32 s{sXCC}, hwreg(HW_REG_XCC_ID)
        v_and_b32 v{t0}, 15, v0          ; lo4
        v_lshrrev_b32 v{t1}, 4, v0       ; t
        """)

    def load_addrs(self):
        a = self.a
        a(f"""
        s_lshl_b32 s3, s{sS}, 19          ; s*64*8192
        s_lshl_b32 s{sT0}, s{sG}, 10
        s_add_u32 s3, s3, s{sT0}
        s_lshl_b32 s{sT0}, s{sWV}, 8
        s_add_u32 s3, s3, s{sT0}
        v_lshlrev_b32 v{S1}, 16, v{t1}    ; 8t*8192
        v_lshl_add_u32 v{S1}, v{t0}, 4, v{S1}
        v_add_u32 v{S1}, s3, v{S1}
        """)
        a(f"""
        s_lshl_b32 s3, s{sGI}, 12
        s_add_u32 s3, s3, 3072
        s_lshl_b32 s{sT0}, s{sS}, 7
        s_add_u32 s3, s3, s{sT0}
        s_lshl_b32 s{sT0}, s{sWV}, 5
        s_add_u32 s3, s3, s{sT0}
        s_lshl_b32 s3, s3, 8              ; bytes
        v_lshlrev_b32 v{S1+1}, 8, v{t0}
        v_lshl_add_u32 v{S1+1}, v{t1}, 4, v{S1+1}
        v_add_u32 v{S1+1}, s3, v{S1+1}
        v_lshlrev_b32 v{S1+2}, 10, v{t1}  ; 4t rows
        v_lshl_add_u32 v{S1+2}, v{t0}, 4, v{S1+2}
        v_add_u32 v{S1+2}, s3, v{S1+2}
        """)
        a(f"""
        s_lshl_b32 s3, s{sG}, 19
        s_lshl_b32 s{sT0}, s{sWV}, 17
        s_add_u32 s3, s3, s{sT0}
        s_lshl_b32 s{sT0}, s{sS}, 7
        s_add_u32 s3, s3, s{sT0}
        v_lshrrev_b32 v{S1+3}, 3, v0
        v_lshlrev_b32 v{S1+3}, 13, v{S1+3}
        v_and_b32 v{t2}, 7, v0
        v_lshl_add_u32 v{S1+3}, v{t2}, 4, v{S1+3}
        v_add_u32 v{S1+3}, s3, v{S1+3}
        """)

    def srds(self):
        a = self.a
        a("s_waitcnt lgkmcnt(0)")
        for srd, p, size in ((SK, sPTR, 33554432), (SV, sPTR+2, 33554432), (SWQ, sPTR+4, 4194304), (SWO, sPTR+6, 4194304), (SWS, sWSP, WS_SIZE)):
            a(f"s_mov_b32 s{srd}, s{p}")
            a(f"s_and_b32 s{srd+1}, s{p+1}, 0xffff")
            a(f"s_mov_b32 s{srd+2}, {size}")
            a(f"s_mov_b32 s{srd+3}, 0x20000")

    def issue_loads(self):
        a = self.a; lm = self.cfg.LOADMOD
        for blk in range(2):
            for e in range(8):
                a(f"s_mov_b32 s{sOFF}, {(32*blk+e)*8192}")
                a(f"buffer_load_dwordx4 {vr(Z(1+blk)+4*e,4)}, v{S1}, s[{SWQ}:{SWQ+3}], s{sOFF} offen{lm}")
        a(f"s_lshl_b32 s3, s{sTY}, 15")
        a(f"s_lshl_b32 s{sT0}, s{sWV}, 13")
        a(f"s_add_u32 s3, s3, s{sT0}")
        for tile in range(2):
            for step in range(4):
                idx = tile*4+step
                a(f"s_add_u32 m0, s3, {idx*1024}")
                a(f"s_mov_b32 s{sOFF}, {tile*4096+step*64}")
                a(f"buffer_load_dwordx4 v{S1+1}, s[{SK}:{SK+3}], s{sOFF} offen lds{lm}")
        for e in range(8):
            row = e if e < 4 else 16 + e - 4
            a(f"s_mov_b32 s{sOFF}, {row*256}")
            a(f"buffer_load_dwordx4 {vr(Z(3)+4*e,4)}, v{S1+2}, s[{SV}:{SV+3}], s{sOFF} offen{lm}")
        for blk in range(2):
            for e in range(8):
                a(f"s_mov_b32 s{sOFF}, {(64*blk+e)*1024}")
                a(f"buffer_load_dwordx4 {vr(Z(4+blk)+4*e,4)}, v{S1+3}, s[{SWO}:{SWO+3}], s{sOFF} offen{lm}")

    def addrs(self):
        a = self.a
        a(f"""
        v_lshrrev_b32 v{t2}, 5, v0          ; half
        v_and_b32 v{t3}, 31, v0             ; gi32
        v_lshrrev_b32 v{t4}, 3, v{t0}       ; lo4>>3
        v_lshlrev_b32 v{aXf}, 7, v{t4}
        v_lshl_add_u32 v{aXf}, v{t1}, 4, v{aXf}
        v_add_u32 v{aXf}, {XL}, v{aXf}
        s_lshl_b32 s{sT0}, s{sGI}, 14
        s_lshl_b32 s{sT1}, s{sWV}, 12
        s_add_u32 s{sT0}, s{sT0}, s{sT1}
        s_lshl_b32 s{sT1}, s{sS}, 9
        s_add_u32 s{sT1}, s{sT1}, s{sT0}    ; + s*512
        v_and_b32 v{t5}, 1, v{t1}           ; t&1
        v_lshlrev_b32 v{aQst}, 5, v{t0}
        v_lshl_add_u32 v{aQst}, v{t5}, 4, v{aQst}
        v_lshl_add_u32 v{aQst}, v{t2}, 20, v{aQst}   ; CSB = 1<<20
        v_add_u32 v{aQst}, s{sT1}, v{aQst}
        v_lshlrev_b32 v{aOst}, 5, v{t0}
        v_lshl_add_u32 v{aOst}, v{t1}, 3, v{aOst}
        v_add_u32 v{aOst}, s{sT1}, v{aOst}
        v_lshlrev_b32 v{aG}, 9, v{t2}
        v_lshl_add_u32 v{aG}, v{t3}, 4, v{aG}
        v_add_u32 v{aG}, s{sT0}, v{aG}
        s_lshl_b32 s{sT0}, s{sTY}, 15
        s_lshl_b32 s{sT1}, s{sWV}, 13
        s_add_u32 s{sT0}, s{sT0}, s{sT1}
        v_lshlrev_b32 v{aKf}, 4, v0
        v_add_u32 v{aKf}, s{sT0}, v{aKf}
        v_lshrrev_b32 v{t6}, 2, v{t0}       ; lo4>>2
        v_lshlrev_b32 v{aQf}, 8, v{t6}
        v_lshl_add_u32 v{aQf}, v{t1}, 4, v{aQf}
        v_add_u32 v{aQf}, {QL}, v{aQf}
        s_lshl_b32 s{sT0}, s{sWV}, 11
        s_add_u32 s{sT0}, s{sT0}, {ORED}
        v_lshlrev_b32 v{aOW}, 2, v0
        v_add_u32 v{aOW}, s{sT0}, v{aOW}
        s_lshl_b32 s{sT0}, s{sWV}, 2
        s_add_u32 s{sT0}, s{sT0}, {ML}
        v_lshlrev_b32 v{aMw}, 4, v{t6}
        v_add_u32 v{aMw}, s{sT0}, v{aMw}
        v_lshlrev_b32 v{aLw}, 4, v{t1}
        v_add_u32 v{aLw}, s{sT0}, v{aLw}
        v_add_u32 v{aLw}, 64, v{aLw}
        s_lshl_b32 s{sT0}, s{sGI}, 2
        s_add_u32 s{sT0}, s{sT0}, s{sWV}
        s_lshl_b32 s{sT0}, s{sT0}, 7
        s_add_u32 s{sT0}, s{sT0}, {AUXO}
        v_add_u32 v{aAo}, v0, v{t2}
        v_and_b32 v{aAo}, 7, v{aAo}
        v_lshlrev_b32 v{aAo}, 3, v{aAo}
        v_add_u32 v{aAo}, s{sT0}, v{aAo}
        s_lshl_b32 s{sT1}, s{sS}, 3
        s_add_u32 s{sT0}, s{sT0}, s{sT1}
        v_mov_b32 v{aAost}, s{sT0}
        s_lshl_b32 s{sT0}, s{sGI}, 7
        s_add_u32 s{sT0}, s{sT0}, {AUXQ}
        v_and_b32 v{aAq}, 7, v0
        v_lshlrev_b32 v{aAq}, 3, v{aAq}
        v_add_u32 v{aAq}, s{sT0}, v{aAq}
        s_lshl_b32 s{sT0}, s{sWV}, 8
        v_lshlrev_b32 v{aPw}, 3, v{t3}
        v_lshl_add_u32 v{aPw}, v{t2}, 2, v{aPw}
        v_add_u32 v{aPw}, s{sT0}, v{aPw}
        v_add_u32 v{aPw}, {QL}, v{aPw}
        v_and_b32 v{t7}, 1, v{t6}           ; (lo4>>2)&1
        v_lshl_add_u32 v{aOf}, v{t1}, 1, v{t7}
        v_lshlrev_b32 v{aOf}, 4, v{aOf}
        v_add_u32 v{aOf}, s{sT0}, v{aOf}
        v_add_u32 v{aOf}, {OL}, v{aOf}
        ; aRw
        s_lshl_b32 s{sT0}, s{sWV}, 9
        s_add_u32 s{sT0}, s{sT0}, {RED}
        v_lshlrev_b32 v{aRw}, 8, v{t4}      ; h*256
        v_and_b32 v{t7}, 7, v0
        v_lshl_add_u32 v{aRw}, v{t7}, 5, v{aRw}
        v_lshl_add_u32 v{aRw}, v{t2}, 4, v{aRw}
        v_add_u32 v{aRw}, s{sT0}, v{aRw}
        v_lshlrev_b32 v{t7}, 4, v0
        v_add_u32 v{t7}, {TRASH}, v{t7}
        v_cmp_eq_u32 vcc, v{t5}, v{t4}
        v_cndmask_b32 v{aRw}, v{t7}, v{aRw}, vcc
        ; M role
        s_lshl_b32 s{sT0}, s{sB}, 3
        s_add_u32 s{sT0}, s{sT0}, s{sS}
        s_lshl_b32 s{sT0}, s{sT0}, 11
        s_add_u32 s{sT0}, s{sT0}, {XB}
        v_lshlrev_b32 v{aXg}, 4, v0         ; t*256 + lo4*16
        v_add_u32 v{aXg}, s{sT0}, v{aXg}
        s_lshl_b32 s{sT1}, s{sG}, 8
        s_add_u32 s{sT0}, s{sT0}, s{sT1}
        v_lshrrev_b32 v{t7}, 2, v0
        v_lshlrev_b32 v{aXst}, 4, v{t7}
        v_add_u32 v{aXst}, s{sT0}, v{aXst}
        v_and_b32 v{aRr}, 3, v0
        v_lshlrev_b32 v{aRr}, 9, v{aRr}
        v_lshl_add_u32 v{aRr}, v{t7}, 4, v{aRr}
        v_add_u32 v{aRr}, {RED}, v{aRr}
        v_lshl_add_u32 v{aXl}, v{t0}, 2, v{t1}
        v_lshlrev_b32 v{aXl}, 1, v{aXl}
        v_add_u32 v{aXl}, {XL}, v{aXl}
        s_lshl_b32 s{sT0}, s{sWV}, 6
        s_add_u32 s{sT0}, s{sT0}, {ORED}
        v_lshlrev_b32 v{aORr}, 9, v{t1}
        v_lshl_add_u32 v{aORr}, v{t0}, 2, v{aORr}
        v_add_u32 v{aORr}, s{sT0}, v{aORr}
        s_lshl_b32 s{sT0}, s{sWV}, 4
        s_add_u32 s{sT0}, s{sT0}, {ML}
        v_mov_b32 v{aMLr}, s{sT0}
        v_mov_b32 v{cs0}, 0
        v_mov_b32 v{cs1}, 0
        """)

    def perm(self, zs, zd, vm_after):
        a = self.a
        for p in range(4):
            a(f"s_waitcnt vmcnt({vm_after + 6 - 2*p})")
            for w in range(4):
                lo = zs + 8*p + w; hi = zs + 8*p + 4 + w
                a(f"v_perm_b32 v{zd+8*w+p}, v{hi}, v{lo}, s{sSELLO}")
                a(f"v_perm_b32 v{zd+8*w+4+p}, v{hi}, v{lo}, s{sSELHI}")

    def read_mode(self):
        a = self.a
        if not self.cfg.FAST: return
        a(f"v_mov_b32 v{t0}, {MODE}")
        a(f"ds_read_b32 v{t0}, v{t0}")
        a("s_waitcnt lgkmcnt(0)")
        a(f"v_readfirstlane_b32 s{sMODE}, v{t0}")

    def gemv(self, addr, off1, W0, W1, T):
        a = self.a
        a(f"ds_read_b128 {vr(T,4)}, v{addr}")
        a(f"ds_read_b128 {vr(T+4,4)}, v{addr} offset:{off1}")
        a("s_waitcnt lgkmcnt(1)")
        for j in range(8):
            a(f"v_mfma_f32_16x16x32_bf16 {vr(S1+4*j,4)}, {vr(T,4)}, {vr(W0+4*j,4)}, 0")
        a("s_waitcnt lgkmcnt(0)")
        for j in (0, 4, 1, 5, 2, 6, 3, 7):
            a(f"v_mfma_f32_16x16x32_bf16 {vr(S1+4*j,4)}, {vr(T+4,4)}, {vr(W1+4*j,4)}, {vr(S1+4*j,4)}")

    def C_layer(self, l, first, vm_extra):
        a = self.a; cfg = self.cfg
        a.c(f"======== layer {l} compute role")
        if first:
            self.perm(Z(1), Z(0), 40 + vm_extra)
            self.perm(Z(2), Z(1), 32 + vm_extra)
            T = Z(2)
        else:
            T = Z(5)
        a(f"s_mov_b32 s{sOFF}, {LB(l)+QB}")
        a("s_barrier")
        self.stamp(1 + 8*l)
        if l == 0: self.read_mode()
        self.gemv(aXf, 64, WQ0, WQ1, T)
        for k in range(4):
            a(f"v_cndmask_b32 v{T+8+k}, v{S1+4*k}, v{S1+16+4*k}, s[{sMODD}:{sMODD+1}]")
        if not first: a("s_mov_b32 exec_hi, 0")
        self.store(f"buffer_store_dwordx4 {vr(T+8,4)}, v{aQst}, s[{SWS}:{SWS+3}], s{sOFF} offen", 'grp')
        if not first: a("s_mov_b32 exec_hi, -1")
        self.stamp(2 + 8*l)
        if first:
            a(f"s_waitcnt vmcnt({24 + vm_extra + 1})")
        for i in range(8):
            a(f"ds_read_b128 {vr(S1+4*i,4)}, v{aKf} offset:{i*1024}")
        if first:
            self.perm(Z(3), Z(2), 16 + vm_extra + 1)
            T = Z(3)
        for k in range(4):
            a(f"v_mov_b32 v{T+28+k}, 0x3f803f80")
        a("s_waitcnt lgkmcnt(0)")
        a("s_barrier")
        self.stamp(3 + 8*l)
        for st in range(4):
            a(f"ds_read_b128 {vr(T+4*st,4)}, v{aQf} offset:{st*64}")
        for st in range(4):
            a(f"s_waitcnt lgkmcnt({3-st})")
            for tile in range(2):
                acc = T + 16 + 4*tile
                c = "0" if st == 0 else vr(acc, 4)
                a(f"v_mfma_f32_16x16x32_bf16 {vr(acc,4)}, {vr(S1+16*tile+4*st,4)}, {vr(T+4*st,4)}, {c}")
        sc = [T + 16 + i for i in range(8)]
        if cfg.ROUND_S:
            for i in range(4):
                a(f"v_cvt_pk_bf16_f32 v{T+i}, v{sc[2*i]}, v{sc[2*i+1]}")
            for i in range(4):
                a(f"v_lshlrev_b32 v{sc[2*i]}, 16, v{T+i}")
                a(f"v_and_b32 v{sc[2*i+1]}, 0xffff0000, v{T+i}")
            for i in range(8):
                a(f"v_mul_f32 v{sc[i]}, s{sSCALE}, v{sc[i]}")
            for i in range(4):
                a(f"v_cvt_pk_bf16_f32 v{T+i}, v{sc[2*i]}, v{sc[2*i+1]}")
            for i in range(4):
                a(f"v_lshlrev_b32 v{sc[2*i]}, 16, v{T+i}")
                a(f"v_and_b32 v{sc[2*i+1]}, 0xffff0000, v{T+i}")
            a(f"s_mov_b32 s{sT0}, s{sLOG2E}")
        else:
            a(f"s_mov_b32 s{sT0}, {hex(f2u(128 ** -0.5 * 1.4426950408889634))}")
        m = T + 4; tmp = T + 5
        a(f"v_max3_f32 v{m}, v{sc[0]}, v{sc[1]}, v{sc[2]}")
        a(f"v_max3_f32 v{tmp}, v{sc[3]}, v{sc[4]}, v{sc[5]}")
        a(f"v_max3_f32 v{m}, v{m}, v{sc[6]}, v{sc[7]}")
        a(f"v_max_f32 v{m}, v{m}, v{tmp}")
        self.redrows("v_max_f32", m, tmp)
        a(f"v_mul_f32 v{m}, s{sT0}, v{m}")
        for i in range(8):
            a(f"v_fma_f32 v{sc[i]}, v{sc[i]}, s{sT0}, -v{m}")
        a(f"ds_write_b32 v{aMw}, v{m}")
        for i in range(8):
            a(f"v_exp_f32 v{sc[i]}, v{sc[i]}")
        for i in range(4):
            a(f"v_cvt_pk_bf16_f32 v{T+24+i}, v{sc[2*i]}, v{sc[2*i+1]}")
        a(f"v_mfma_f32_16x16x32_bf16 {vr(T+8,4)}, {vr(T+24,4)}, {vr(T+28,4)}, 0")
        for j in range(8):
            a(f"v_mfma_f32_16x16x32_bf16 {vr(S1+4*j,4)}, {vr(T+24,4)}, {vr(VF+4*j,4)}, 0")
        a(f"ds_write_b32 v{aLw}, v{T+8}")
        for jp in range(4):
            a(f"ds_write2st64_b32 v{aOW}, v{S1+8*jp}, v{S1+8*jp+4} offset0:{2*jp} offset1:{2*jp+1}")
        a("s_waitcnt lgkmcnt(0)")
        a("s_barrier")
        self.stamp(4 + 8*l)
        if first:
            self.perm(Z(4), Z(3), 8 + vm_extra + 1)
            self.perm(Z(5), Z(4), 0 + vm_extra + 1)
            T = Z(5)
        a(f"s_mov_b32 s{sOFF}, {LB(l)}")
        a(f"s_mov_b32 s{sT1}, {LB(l)+OB}")
        ml = T + 16
        self.poll([f"buffer_load_dwordx2 {vr(ml,2)}, v{aAo}, s[{SWS}:{SWS+3}], s{sOFF} offen sc1"], [ml, ml+1], t0)
        self.poll([f"buffer_load_dwordx4 {vr(T+4*e,4)}, v{aG}, s[{SWS}:{SWS+3}], s{sT1} offen offset:{e*1024} sc1" for e in range(4)],
                  list(range(T, T+16)), t0)
        self.stamp(5 + 8*l)
        mx = T + 18; w = T + 19; ls = T + 20
        a(f"v_mov_b32 v{mx}, v{ml}")
        self.red8("v_max_f32", mx)
        a(f"v_sub_f32 v{w}, v{ml}, v{mx}")
        a(f"v_exp_f32 v{w}, v{w}")
        a(f"v_mul_f32 v{ls}, v{w}, v{ml+1}")
        self.red8("v_add_f32", ls)
        a(f"v_rcp_f32 v{ls}, v{ls}")
        a(f"v_mul_f32 v{w}, v{w}, v{ls}")
        acc = T + 24
        for e in range(4):
            for k in range(4):
                op = "v_mul_f32_dpp" if e == 0 else "v_fmac_f32_dpp"
                a(f"{op} v{acc+k}, v{w}, v{T+4*e+k} row_newbcast:{2*e} {DPPF}")
        self.halves(acc)
        a(f"v_cvt_pk_bf16_f32 v{acc}, v{acc}, v{acc+1}")
        a(f"ds_write_b32 v{aPw}, v{acc} offset:{OL-QL}")
        a("s_waitcnt lgkmcnt(0)")
        self.gemv(aOf, 128, WO0, WO1, T)
        for k in range(4):
            a(f"v_cndmask_b32 v{T+8+k}, v{S1+4*k}, v{S1+16+4*k}, s[{sMHI}:{sMHI+1}]")
        a(f"ds_write_b128 v{aRw}, {vr(T+8,4)}")
        a("s_waitcnt lgkmcnt(0)")
        a("s_barrier")
        self.stamp(6 + 8*l)

    def halves(self, acc):
        a = self.a
        a(f"v_permlane32_swap_b32 v{acc}, v{acc+2}")
        a(f"v_permlane32_swap_b32 v{acc+1}, v{acc+3}")
        a(f"v_add_f32 v{acc}, v{acc}, v{acc+2}")
        a(f"v_add_f32 v{acc+1}, v{acc+1}, v{acc+3}")

    def xgather(self, lprev):
        a = self.a
        T = S1
        a(f"ds_read_u16 v{T+10}, v{aXl}")
        a(f"s_mov_b32 s{sOFF}, {LB(lprev)}")
        a("s_waitcnt lgkmcnt(0)")
        a(f"v_lshlrev_b32 v{T+10}, 16, v{T+10}")
        self.poll([f"buffer_load_dwordx4 {vr(T+4*e,4)}, v{aXg}, s[{SWS}:{SWS+3}], s{sOFF} offen offset:{e*1024} sc1" for e in range(2)],
                  list(range(T, T+8)), t0)
        for k in range(4):
            a(f"v_add_f32 v{T+k}, v{T+k}, v{T+4+k}")
        self.halves(T)
        a(f"v_permlane16_swap_b32 v{T}, v{T+1}")
        a(f"v_add_f32 v{T}, v{T}, v{T+1}")
        self.bf16r(T, T+1)
        a(f"v_add_f32 v{T}, v{T}, v{T+10}")
        a(f"v_cvt_pk_bf16_f32 v{T+9}, v{T}, v{T}")

    def stats(self, l):
        a = self.a
        T = S1
        a(f"v_lshlrev_b32 v{T+8}, 16, v{T+9}")
        a(f"v_mov_b32 v{T}, v{T+8}")
        self.red64("v_add_f32", T, T+2)
        a(f"v_fma_f32 v{T+1}, v{T}, v{t1}, v{T+8}")
        a(f"v_mul_f32 v{T+1}, v{T+1}, v{T+1}")
        self.red64("v_add_f32", T+1, T+2)
        a(f"s_lshl_b32 s{sT0}, s{sS}, 3")
        a(f"s_lshl_b32 s{sT1}, s{sGI}, 7")
        a(f"s_add_u32 s{sT0}, s{sT0}, s{sT1}")
        a(f"s_add_u32 s{sT0}, s{sT0}, {AUXQ}")
        a(f"v_mov_b32 v{T+2}, s{sT0}")
        a(f"s_mov_b32 s{sOFF}, {LB(l)}")
        a("s_mov_b64 exec, 1")
        self.store(f"buffer_store_dwordx2 {vr(T,2)}, v{T+2}, s[{SWS}:{SWS+3}], s{sOFF} offen", 'grp')
        a("s_mov_b64 exec, -1")

    def M_layer(self, l, first, T, after_q=None):
        a = self.a; cfg = self.cfg
        a.c(f"======== layer {l} comm role")
        xw = 1 if l == 0 else 0
        if l > 0:
            sk = a.newlabel("Lsk")
            a(f"s_cmp_lg_u32 s{sWV}, 0")
            a(f"s_cbranch_scc1 {sk}")
            self.xgather(l - 1)
            a(f"ds_write_b16 v{aXl}, v{S1+9}")
            a("s_waitcnt lgkmcnt(0)")
            a.label(sk)
        a("s_barrier")
        self.stamp(1 + 8*l)
        if l == 0: self.read_mode()
        sk = a.newlabel("Lsk")
        a(f"s_cmp_lg_u32 s{sWV}, {xw}")
        a(f"s_cbranch_scc1 {sk}")
        a(f"v_mov_b32 v{t1}, {hex(f2u(-1.0/64))}")
        self.stats(l)
        a.label(sk)
        a(f"s_mov_b32 s{sOFF}, {LB(l)}")
        a(f"s_mov_b32 s{sT1}, {LB(l)+QB}")
        st = T + 16
        self.poll([f"buffer_load_dwordx2 {vr(st,2)}, v{aAq}, s[{SWS}:{SWS+3}], s{sOFF} offen sc1"], [st, st+1], t0)
        mean = T + 18; d = T + 19; tmp = T + 20
        a(f"v_mov_b32 v{mean}, v{st}")
        self.red8("v_add_f32", mean)
        a(f"v_mul_f32 v{mean}, {hex(f2u(1.0/512))}, v{mean}")
        a(f"v_mul_f32 v{d}, {hex(f2u(1.0/64))}, v{st}")
        a(f"v_sub_f32 v{d}, v{d}, v{mean}")
        a(f"v_mul_f32 v{d}, v{d}, v{d}")
        a(f"v_mul_f32 v{d}, 0x42800000, v{d}")
        a(f"v_add_f32 v{d}, v{d}, v{st+1}")
        self.red8("v_add_f32", d)
        a(f"v_mul_f32 v{d}, {hex(f2u(1.0/512))}, v{d}")
        self.bf16r(mean, tmp)
        self.bf16r(d, tmp)
        a(f"v_add_f32 v{d}, {hex(f2u(1e-5))}, v{d}")
        self.bf16r(d, tmp)
        a(f"v_sqrt_f32 v{d}, v{d}")
        self.bf16r(d, tmp)
        a(f"v_rcp_f32 v{d}, v{d}")
        if first:
            a(f"s_mov_b32 s{sOFF}, {LB(l)+CSB}")
            self.poll([f"buffer_load_dwordx4 {vr(T+4*e,4)}, v{aG}, s[{SWS}:{SWS+3}], s{sOFF} offen offset:{e*1024} sc1" for e in range(4)],
                      list(range(T, T+16)), t0)
            self.sum4(T)
            a(f"v_mov_b32 v{cs0}, v{T}")
            a(f"v_mov_b32 v{cs1}, v{T+1}")
        a(f"v_mul_f32 v{T+21}, v{mean}, v{cs0}")
        a(f"v_mul_f32 v{T+22}, v{mean}, v{cs1}")
        self.poll([f"buffer_load_dwordx4 {vr(T+4*e,4)}, v{aG}, s[{SWS}:{SWS+3}], s{sT1} offen offset:{e*1024} sc1" for e in range(4)],
                  list(range(T, T+16)), t0)
        self.sum4(T)
        a(f"v_sub_f32 v{T}, v{T}, v{T+21}")
        a(f"v_sub_f32 v{T+1}, v{T+1}, v{T+22}")
        a(f"v_mul_f32 v{T}, v{T}, v{d}")
        a(f"v_mul_f32 v{T+1}, v{T+1}, v{d}")
        a(f"v_cvt_pk_bf16_f32 v{T}, v{T}, v{T+1}")
        a(f"ds_write_b32 v{aPw}, v{T}")
        a("s_waitcnt lgkmcnt(0)")
        a("s_barrier")
        self.stamp(3 + 8*l)
        if after_q: after_q()
        T = S1
        a(f"s_mov_b32 s{sOFF}, {LB(l)}")
        a(f"s_mov_b32 s{sT1}, {LB(l)+OB}")
        a("s_barrier")
        self.stamp(4 + 8*l)
        a(f"ds_read_b128 {vr(T+8,4)}, v{aMLr}")
        a(f"ds_read_b128 {vr(T+12,4)}, v{aMLr} offset:64")
        for v in range(4):
            a(f"ds_read2st64_b32 {vr(T+2*v,2)}, v{aORr} offset0:{8*v} offset1:{8*v+1}")
        M = T + 16
        a("s_waitcnt lgkmcnt(5)")
        a(f"v_max3_f32 v{M}, v{T+8}, v{T+9}, v{T+10}")
        a(f"v_max_f32 v{M}, v{M}, v{T+11}")
        for v in range(4): a(f"v_sub_f32 v{T+8+v}, v{T+8+v}, v{M}")
        for v in range(4): a(f"v_exp_f32 v{T+8+v}, v{T+8+v}")
        a("s_waitcnt lgkmcnt(0)")
        o = T + 18
        a(f"v_mul_f32 v{M+1}, v{T+8}, v{T+12}")
        a(f"v_mul_f32 v{o}, v{T+8}, v{T}")
        a(f"v_mul_f32 v{o+1}, v{T+8}, v{T+1}")
        for v in range(1, 4):
            a(f"v_fmac_f32 v{M+1}, v{T+8+v}, v{T+12+v}")
            a(f"v_fmac_f32 v{o}, v{T+8+v}, v{T+2*v}")
            a(f"v_fmac_f32 v{o+1}, v{T+8+v}, v{T+2*v+1}")
        self.store(f"buffer_store_dwordx2 {vr(o,2)}, v{aOst}, s[{SWS}:{SWS+3}], s{sT1} offen", 'grp')
        a("s_mov_b64 exec, 1")
        self.store(f"buffer_store_dwordx2 {vr(M,2)}, v{aAost}, s[{SWS}:{SWS+3}], s{sOFF} offen", 'grp')
        a("s_mov_b64 exec, -1")
        self.stamp(5 + 8*l)
        a("s_barrier")
        self.stamp(6 + 8*l)
        sk = a.newlabel("Lsk")
        a(f"s_cmp_lg_u32 s{sWV}, 0")
        a(f"s_cbranch_scc1 {sk}")
        a(f"ds_read_b128 {vr(T,4)}, v{aRr}")
        a(f"ds_read_b128 {vr(T+4,4)}, v{aRr} offset:256")
        a(f"s_mov_b32 s{sM2}, 0x11111111")
        a(f"s_mov_b32 s{sM2+1}, 0x11111111")
        a("s_waitcnt lgkmcnt(0)")
        for k in range(4): a(f"v_add_f32 v{T+k}, v{T+k}, v{T+4+k}")
        for k in range(4): a(f"v_add_f32_dpp v{T+k}, v{T+k}, v{T+k} quad_perm:[1,0,3,2] {DPPF}")
        for k in range(4): a(f"v_add_f32_dpp v{T+k}, v{T+k}, v{T+k} quad_perm:[2,3,0,1] {DPPF}")
        a(f"s_mov_b64 exec, s[{sM2}:{sM2+1}]")
        self.store(f"buffer_store_dwordx4 {vr(T,4)}, v{aXst}, s[{SWS}:{SWS+3}], s{sOFF} offen", 'dev')
        a("s_mov_b64 exec, -1")
        self.stamp(7 + 8*l)
        a.label(sk)

    def sum4(self, T):
        a = self.a
        for k in range(4): a(f"v_add_f32 v{T+k}, v{T+k}, v{T+4+k}")
        for k in range(4): a(f"v_add_f32 v{T+8+k}, v{T+8+k}, v{T+12+k}")
        for k in range(4): a(f"v_add_f32 v{T+k}, v{T+k}, v{T+8+k}")
        self.halves(T)

    def b_start(self):
        a = self.a
        T = Z(0)
        a.c("---- clean")
        a(f"""
        s_lshl_b32 s3, s{sB}, 8
        s_load_dword s{sTAG}, s[{sWSP}:{sWSP+1}], s3
        v_mov_b32 v{T}, -1
        v_mov_b32 v{T+1}, -1
        v_mov_b32 v{T+2}, -1
        v_mov_b32 v{T+3}, -1
        s_add_u32 s{sOFF}, s{sWV}, 1
        s_lshl_b32 s{sOFF}, s{sOFF}, 21         ; LB(wv)
        s_lshl_b32 s{sT0}, s{sGI}, 14
        s_lshl_b32 s{sT1}, s{sS}, 9
        s_add_u32 s{sT0}, s{sT0}, s{sT1}
        v_lshrrev_b32 v{T+4}, 5, v0
        v_lshlrev_b32 v{T+4}, 12, v{T+4}
        v_and_b32 v{T+5}, 31, v0
        v_lshl_add_u32 v{T+4}, v{T+5}, 4, v{T+4}
        v_add_u32 v{T+4}, s{sT0}, v{T+4}        ; records u=0,1
        v_add_u32 v{T+5}, 0x2000, v{T+4}        ; records u=2,3
        """)
        for reg in (QB, OB, CSB):
            a(f"s_add_u32 s{sT1}, s{sOFF}, {reg}")
            a(f"buffer_store_dwordx4 {vr(T,4)}, v{T+4}, s[{SWS}:{SWS+3}], s{sT1} offen sc1")
            a(f"buffer_store_dwordx4 {vr(T,4)}, v{T+5}, s[{SWS}:{SWS+3}], s{sT1} offen sc1")
        a(f"""
        s_mov_b32 s{sM2}, 0x11111111
        s_mov_b32 s{sM2+1}, 0x11111111
        s_mov_b64 exec, s[{sM2}:{sM2+1}]
        buffer_store_dwordx4 {vr(T,4)}, v{aXst}, s[{SWS}:{SWS+3}], s{sOFF} offen sc1
        s_mov_b64 exec, -1
        s_lshl_b32 s{sT0}, s{sGI}, 9
        s_lshl_b32 s{sT1}, s{sS}, 3
        s_add_u32 s{sT0}, s{sT0}, s{sT1}
        s_add_u32 s{sT0}, s{sT0}, {AUXO}
        v_lshlrev_b32 v{T+6}, 7, v0
        v_add_u32 v{T+6}, s{sT0}, v{T+6}
        s_lshl_b32 s{sT0}, s{sGI}, 7
        s_add_u32 s{sT0}, s{sT0}, s{sT1}
        s_add_u32 s{sT0}, s{sT0}, {AUXQ}
        v_mov_b32 v{T+7}, s{sT0}
        v_cmp_eq_u32 vcc, 4, v0
        v_cndmask_b32 v{T+6}, v{T+6}, v{T+7}, vcc
        s_mov_b64 exec, 31
        buffer_store_dwordx2 {vr(T,2)}, v{T+6}, s[{SWS}:{SWS+3}], s{sOFF} offen sc1
        s_mov_b64 exec, -1
        """)
        l1 = a.newlabel("Lb"); l2 = a.newlabel("Lb")
        a(f"s_cmp_lg_u32 s{sWV}, 1")
        a(f"s_cbranch_scc1 {l1}")
        a.c("---- x init (wave 1)")
        a(f"""
        s_lshl_b32 s{sT0}, s{sB}, 10
        s_lshl_b32 s{sT1}, s{sS}, 7
        s_add_u32 s{sT0}, s{sT0}, s{sT1}
        s_sub_u32 s{sT0}, s{sT0}, {XL}
        v_add_u32 v{T+8}, s{sT0}, v{aXl}
        global_load_ushort v{S1+9}, v{T+8}, s[{sXP}:{sXP+1}]
        v_mov_b32 v{T+9}, 0x3f80
        ds_write_b16 v{aXl}, v{T+9} offset:128
        s_waitcnt vmcnt(0)
        ds_write_b16 v{aXl}, v{S1+9}
        """)
        a.label(l1)
        a("s_waitcnt vmcnt(0) lgkmcnt(0)")
        a(f"s_add_u32 s{sTAG}, s{sTAG}, 1")
        a(f"s_cmp_lg_u32 s{sWV}, 0")
        a(f"s_cbranch_scc1 {l2}")
        a.c("---- handshake (wave 0)")
        a(f"""
        s_lshl_b32 s{sT0}, s{sGI}, 3
        s_add_u32 s{sT0}, s{sT0}, s{sS}
        s_lshl_b32 s{sT0}, s{sT0}, 6
        s_add_u32 s{sT0}, s{sT0}, {HS}
        v_mov_b32 v{T+4}, s{sT0}
        v_mov_b32 v{T}, s{sTAG}
        v_mov_b32 v{T+1}, s{sXCC}
        s_mov_b64 exec, 1
        buffer_store_dwordx2 {vr(T,2)}, v{T+4}, s[{SWS}:{SWS+3}], 0 offen sc1
        s_mov_b64 exec, -1
        v_and_b32 v{T+5}, 7, v0
        s_lshl_b32 s{sT0}, s{sGI}, 3
        v_add_u32 v{T+6}, s{sT0}, v{T+5}
        s_lshl_b32 s{sT0}, s{sB}, 6
        s_add_u32 s{sT0}, s{sT0}, s{sS}
        v_lshlrev_b32 v{T+7}, 3, v{T+5}
        v_add_u32 v{T+7}, s{sT0}, v{T+7}
        v_and_b32 v{T+5}, 8, v0
        v_cmp_eq_u32 vcc, 0, v{T+5}
        v_cndmask_b32 v{T+6}, v{T+7}, v{T+6}, vcc
        v_lshlrev_b32 v{T+6}, 6, v{T+6}
        v_add_u32 v{T+6}, {HS}, v{T+6}
        s_mov_b32 s{sCNT}, 0
        s_setprio 0
        L_hs:
        buffer_load_dwordx2 {vr(T+8,2)}, v{T+6}, s[{SWS}:{SWS+3}], 0 offen sc1
        s_waitcnt vmcnt(0)
        v_cmp_ne_u32 vcc, s{sTAG}, v{T+8}
        s_cbranch_vccz L_hsd
        s_add_u32 s{sCNT}, s{sCNT}, 1
        s_cmp_lt_u32 s{sCNT}, s{sLIM}
        s_cbranch_scc1 L_hs
        s_mov_b32 s{sLIM}, 0
        L_hsd:
        s_setprio 2
        v_cmp_ne_u32 vcc, s{sXCC}, v{T+9}
        s_and_b32 s{sT0}, vcc_lo, 0xff
        s_cmp_eq_u32 s{sT0}, 0
        s_cselect_b32 s{sT0}, 1, 0
        v_mov_b32 v{T}, s{sT0}
        v_mov_b32 v{T+1}, {MODE}
        ds_write_b32 v{T+1}, v{T}
        s_waitcnt lgkmcnt(0)
        """)
        a.label(l2)

    def final(self):
        a = self.a
        a.c("======== final")
        a(f"s_cmp_lg_u32 s{sWV}, 0")
        a("s_cbranch_scc1 L_fin")
        a(f"s_cmp_lg_u32 s{sG}, 0")
        a("s_cbranch_scc1 L_fin")
        self.xgather(3)
        a(f"""
        s_lshl_b32 s{sT0}, s{sB}, 10
        s_lshl_b32 s{sT1}, s{sS}, 7
        s_add_u32 s{sT0}, s{sT0}, s{sT1}
        s_sub_u32 s{sT0}, s{sT0}, {XL}
        v_add_u32 v{S1+8}, s{sT0}, v{aXl}
        global_store_short v{S1+8}, v{S1+9}, s[{sOUTP}:{sOUTP+1}]
        s_cmp_lg_u32 s{sS}, 0
        s_cbranch_scc1 L_fin
        s_lshl_b32 s{sT0}, s{sB}, 8
        v_mov_b32 v{S1}, s{sT0}
        v_mov_b32 v{S1+1}, s{sTAG}
        s_mov_b64 exec, 1
        buffer_store_dword v{S1+1}, v{S1}, s[{SWS}:{SWS+3}], 0 offen sc1
        s_mov_b64 exec, -1
        """)

    def prof_out(self):
        if not self.cfg.PROF: return
        a = self.a
        self.stamp(33)
        a(f"""
        s_lshl_b32 s{sT0}, s2, 3
        s_lshl_b32 s{sT1}, s{sTY}, 2
        s_add_u32 s{sT0}, s{sT0}, s{sT1}
        s_add_u32 s{sT0}, s{sT0}, s{sWV}
        s_lshl_b32 s{sT0}, s{sT0}, 8
        s_add_u32 s{sT0}, s{sT0}, {PROFB}
        v_mov_b32 v{t0}, 0
        """)
        for i in range(34):
            a(f"v_writelane_b32 v{t0}, s{sPROF+i}, {i}")
        a(f"s_memrealtime s[98:99]")
        a("s_waitcnt lgkmcnt(0)")
        a(f"v_writelane_b32 v{t0}, s98, 34")
        a(f"v_writelane_b32 v{t0}, s{sXCC}, 35")
        a(f"v_writelane_b32 v{t0}, s{sMODE}, 36")
        a(f"v_lshlrev_b32 v{t1}, 2, v0")
        a(f"v_add_u32 v{t1}, s{sT0}, v{t1}")
        a(f"buffer_store_dword v{t0}, v{t1}, s[{SWS}:{SWS+3}], 0 offen")

    def build(self):
        a = self.a
        if self.cfg.PROF:
            for i in range(34): a(f"s_mov_b32 s{sPROF+i}, 0")
        self.prologue()
        self.load_addrs()
        self.srds()
        a(f"s_cmp_eq_u32 s{sTY}, 1")
        a("s_cbranch_scc1 L_B")
        self.issue_loads()
        self.addrs()
        self.C_layer(0, True, 0)
        self.M_layer(1, True, Z(5))
        self.C_layer(2, False, 0)
        self.M_layer(3, False, Z(5))
        a("s_branch L_fin")
        a.label("L_B")
        self.addrs()
        self.b_start()
        def after_q():
            a(f"v_and_b32 v{t0}, 15, v0")
            a(f"v_lshrrev_b32 v{t1}, 4, v0")
            self.load_addrs()
            self.issue_loads()
        self.M_layer(0, True, Z(0), after_q)
        self.C_layer(1, True, 2)
        self.M_layer(2, False, Z(5))
        self.C_layer(3, False, 0)
        self.final()
        a.label("L_fin")
        self.prof_out()
        a.label("L_end")
        a("s_endpgm")
        lines = hazard.run(a.lines)
        return "\n".join(lines) + "\n"

def header():
    ref = open(f"cdna_kernels/{NAME}.s.ref").read().split("\n")
    out = []
    for l in ref:
        if l.startswith("; @launch"): break
        out.append(l)
    out.append(f"; @launch grid=(256,1,1) block=(512,1,1) lds={LDS_SIZE}")
    return "\n".join(out)

def generate(cfg):
    g = Gen(cfg)
    body = g.build()
    return kernel_wrap(NAME + "_kernel", body, 256, 102, 256, 104, header())

if __name__ == "__main__":
    ap = argparse.ArgumentParser()
    ap.add_argument("-o", default=f"cdna_kernels/{NAME}.s")
    ap.add_argument("--set", action="append", default=[])
    args = ap.parse_args()
    cfg = Cfg()
    for s in args.set:
        k, v = s.split("=", 1)
        setattr(cfg, k, eval(v))
    open(args.o, "w").write(generate(cfg))
    print("wrote", args.o)
```

```python
import sys, struct, argparse
sys.path.insert(0, 'gen')
from asmlib import *
import hazard

NAME = "interleave_layers__sliding_block_cached__sliding_block_cached__decode"
def f2u(x): return struct.unpack("<I", struct.pack("<f", x))[0]

class Cfg:
    FAST = True
    ROUND_S = True
    PROF = False
    LOADMOD = " nt"
    PREFETCH = True
    SPIN = 1 << 15

KL = 0
XL = 0x10000
QL = 0x10100
OL = 0x10500
ML = 0x10900
MODE = 0x10980
FLG = 0x10990
RED = 0x10A00
ORED = 0x11200
TRASH = 0x13200
LDS_SIZE = 0x13600
EPOCH = 0
HS = 0x1000
PROFB = 0x40000
LS = 0x200000
def LB(l): return LS * (l + 1)
QB, OB, CSB, AUXQ, AUXO, XB = 0, 0x80000, 0x100000, 0x180000, 0x190000, 0x1A0000
WS_SIZE = 268435456
sG, sB, sS, sWV, sTY, sGI, sMODE, sLIM = 4, 5, 6, 7, 8, 9, 10, 11
SWS = 12
SWQ, SK, SV, SWO = 16, 20, 24, 28
sPTR = 32
sWSP, sOUTP, sXP = 40, 42, 44
sSELLO, sSELHI = 46, 47
sMODD, sMHI = 48, 50
sOFF, sCNT, sTAG, sT0, sT1, sOFF2 = 52, 53, 54, 55, 56, 57
sM2 = 58
sSCALE, sLOG2E = 60, 61
sXCC = 62
sPROF = 64
(aXf, aQst, aKf, aQf, aOW, aMw, aLw, aG, aAo, aAq, aPw, aOf, aRw,
 aXg, aXl, aORr, aMLr, aOst, aAost, aRr, aXst, cs0, cs1) = range(1, 24)
t0, t1, t2, t3, t4, t5, t6, t7 = range(24, 32)
DUM = 28
S1 = 32
def Z(i): return 64 + 32 * i
WQ0, WQ1, VF, WO0, WO1 = Z(0), Z(1), Z(2), Z(3), Z(4)
DPPF = "row_mask:0xf bank_mask:0xf"
WSR = f"s[{SWS}:{SWS+3}]"
P_CRIT, P_POLL, P_LA, P_LB = 3, 2, 1, 0

class Gen:
    def __init__(self, cfg):
        self.a = Asm(); self.cfg = cfg

    def stamp(self, idx):
        if not self.cfg.PROF: return
        a = self.a
        a("s_memtime s[98:99]")
        a("s_waitcnt lgkmcnt(0)")
        a(f"s_mov_b32 s{sPROF+idx}, s98")

    def store(self, instr, scope):
        a = self.a
        if scope == 'dev' or not self.cfg.FAST:
            a(instr + " sc1"); return
        l1 = a.newlabel("Lst"); l2 = a.newlabel("Lst")
        a(f"s_cmp_eq_u32 s{sMODE}, 0")
        a(f"s_cbranch_scc1 {l1}")
        a(instr)
        a(f"s_branch {l2}")
        a.label(l1)
        a(instr + " sc1")
        a.label(l2)

    def poll(self, loads, regs, tmp):
        a = self.a
        L = a.newlabel("Lp"); D = a.newlabel("Lpd")
        a(f"s_mov_b32 s{sCNT}, 0")
        a(f"s_setprio {P_POLL}")
        a.label(L)
        for x in loads: a(x)
        a("s_waitcnt vmcnt(0)")
        rs = list(regs)
        if len(rs) == 2:
            a(f"v_max_u32 v{tmp}, v{rs[0]}, v{rs[1]}")
        else:
            a(f"v_max3_u32 v{tmp}, v{rs[0]}, v{rs[1]}, v{rs[2]}")
            rs = rs[3:]
            while len(rs) >= 2:
                a(f"v_max3_u32 v{tmp}, v{tmp}, v{rs[0]}, v{rs[1]}"); rs = rs[2:]
            if rs: a(f"v_max_u32 v{tmp}, v{tmp}, v{rs[0]}")
        a(f"v_cmp_eq_u32 vcc, -1, v{tmp}")
        a(f"s_cbranch_vccz {D}")
        a(f"s_add_u32 s{sCNT}, s{sCNT}, 1")
        a(f"s_cmp_lt_u32 s{sCNT}, s{sLIM}")
        a(f"s_cbranch_scc1 {L}")
        a(f"s_mov_b32 s{sLIM}, 0")
        a.label(D)
        a(f"s_setprio {P_CRIT}")

    def bulk(self, T, soff):
        return [f"buffer_load_dwordx4 {vr(T+4*e,4)}, v{aG}, {WSR}, s{soff} offen offset:{e*1024} sc1" for e in range(4)]

    def flag_add(self, off):
        a = self.a
        a(f"v_mov_b32 v{t0}, {FLG+off}")
        a(f"v_mov_b32 v{t1}, 1")
        a("s_mov_b64 exec, 1")
        a(f"ds_add_u32 v{t0}, v{t1}")
        a("s_mov_b64 exec, -1")
    def flag_wait(self, off, target):
        a = self.a
        L = a.newlabel("Lf"); D = a.newlabel("Lfd")
        a(f"v_mov_b32 v{t0}, {FLG+off}")
        a(f"s_mov_b32 s{sCNT}, 0")
        a.label(L)
        a(f"ds_read_b32 v{t1}, v{t0}")
        a("s_waitcnt lgkmcnt(0)")
        a(f"v_readfirstlane_b32 s{sT0}, v{t1}")
        a(f"s_cmp_ge_u32 s{sT0}, {target}")
        a(f"s_cbranch_scc1 {D}")
        a(f"s_add_u32 s{sCNT}, s{sCNT}, 1")
        a(f"s_cmp_lt_u32 s{sCNT}, 0x200000")
        a(f"s_cbranch_scc1 {L}")
        a.label(D)

    def bf16r(self, v, tmp):
        self.a(f"v_cvt_pk_bf16_f32 v{tmp}, v{v}, v{v}")
        self.a(f"v_lshlrev_b32 v{v}, 16, v{tmp}")
    def red8(self, op, v):
        a = self.a
        a(f"{op}_dpp v{v}, v{v}, v{v} quad_perm:[1,0,3,2] {DPPF}")
        a(f"{op}_dpp v{v}, v{v}, v{v} quad_perm:[2,3,0,1] {DPPF}")
        a(f"{op}_dpp v{v}, v{v}, v{v} row_half_mirror {DPPF}")
    def redrows(self, op, v, tmp):
        a = self.a
        a(f"v_mov_b32 v{tmp}, v{v}")
        a(f"v_permlane16_swap_b32 v{v}, v{tmp}")
        a(f"{op} v{v}, v{v}, v{tmp}")
        a(f"v_mov_b32 v{tmp}, v{v}")
        a(f"v_permlane32_swap_b32 v{v}, v{tmp}")
        a(f"{op} v{v}, v{v}, v{tmp}")
    def red64(self, op, v, tmp):
        self.red8(op, v)
        self.a(f"{op}_dpp v{v}, v{v}, v{v} row_mirror {DPPF}")
        self.redrows(op, v, tmp)
    def halves(self, acc):
        a = self.a
        a(f"v_permlane32_swap_b32 v{acc}, v{acc+2}")
        a(f"v_permlane32_swap_b32 v{acc+1}, v{acc+3}")
        a(f"v_add_f32 v{acc}, v{acc}, v{acc+2}")
        a(f"v_add_f32 v{acc+1}, v{acc+1}, v{acc+3}")
    def sum4(self, T):
        a = self.a
        for k in range(4): a(f"v_add_f32 v{T+k}, v{T+k}, v{T+4+k}")
        for k in range(4): a(f"v_add_f32 v{T+8+k}, v{T+8+k}, v{T+12+k}")
        for k in range(4): a(f"v_add_f32 v{T+k}, v{T+k}, v{T+8+k}")
        self.halves(T)
    def ln_den(self, mean, d, tmp):
        a = self.a
        self.bf16r(mean, tmp)
        self.bf16r(d, tmp)
        a(f"v_add_f32 v{d}, {hex(f2u(1e-5))}, v{d}")
        self.bf16r(d, tmp)
        a(f"v_sqrt_f32 v{d}, v{d}")
        self.bf16r(d, tmp)
        a(f"v_rcp_f32 v{d}, v{d}")

    def prologue(self):
        a = self.a
        a(f"""
        s_cmp_ge_u32 s2, 256
        s_cbranch_scc1 L_end
        v_lshrrev_b32 v{t0}, 6, v0
        s_load_dwordx2 s[{sWSP}:{sWSP+1}], s[0:1], 96
        v_readfirstlane_b32 s3, v{t0}
        s_load_dwordx2 s[{sXP}:{sXP+1}], s[0:1], 0
        s_load_dwordx2 s[{sOUTP}:{sOUTP+1}], s[0:1], 80
        s_lshr_b32 s{sTY}, s3, 2
        s_and_b32 s{sWV}, s3, 3
        s_mul_i32 s3, s{sTY}, 40
        s_add_u32 s3, s3, 8
        s_load_dwordx8 s[{sPTR}:{sPTR+7}], s[0:1], s3
        """)
        self.stamp(0)
        a(f"""
        v_and_b32 v0, 63, v0
        s_and_b32 s{sG}, s2, 7
        s_lshr_b32 s3, s2, 3
        s_and_b32 s{sS}, s3, 7
        s_lshr_b32 s{sB}, s3, 3
        s_lshl_b32 s{sGI}, s{sB}, 3
        s_add_u32 s{sGI}, s{sGI}, s{sG}
        s_mov_b32 s{sMODE}, 0
        s_mov_b32 s{sLIM}, {self.cfg.SPIN}
        s_mov_b32 s{sSELLO}, 0x05040100
        s_mov_b32 s{sSELHI}, 0x07060302
        s_mov_b32 s{sMODD}, 0xffff0000
        s_mov_b32 s{sMODD+1}, 0xffff0000
        s_mov_b32 s{sMHI}, 0
        s_mov_b32 s{sMHI+1}, -1
        s_mov_b32 s{sM2}, 0x11111111
        s_mov_b32 s{sM2+1}, 0x11111111
        s_mov_b32 s{sSCALE}, {hex(f2u(128 ** -0.5))}
        s_mov_b32 s{sLOG2E}, {hex(f2u(1.4426950408889634))}
        s_getreg_b32 s{sXCC}, hwreg(HW_REG_XCC_ID)
        """)

    def lanes(self):
        self.a(f"v_and_b32 v{t0}, 15, v0          ; lo4")
        self.a(f"v_lshrrev_b32 v{t1}, 4, v0       ; t")

    def addr_wq(self, r):
        self.a(f"""
        s_lshl_b32 s3, s{sS}, 19
        s_lshl_b32 s{sT0}, s{sG}, 10
        s_add_u32 s3, s3, s{sT0}
        s_lshl_b32 s{sT0}, s{sWV}, 8
        s_add_u32 s3, s3, s{sT0}
        v_lshlrev_b32 v{r}, 16, v{t1}
        v_lshl_add_u32 v{r}, v{t0}, 4, v{r}
        v_add_u32 v{r}, s3, v{r}
        """)
    def addr_kv(self, rk, rv):
        self.a(f"""
        s_lshl_b32 s3, s{sGI}, 12
        s_add_u32 s3, s3, 3072
        s_lshl_b32 s{sT0}, s{sS}, 7
        s_add_u32 s3, s3, s{sT0}
        s_lshl_b32 s{sT0}, s{sWV}, 5
        s_add_u32 s3, s3, s{sT0}
        s_lshl_b32 s3, s3, 8
        v_lshlrev_b32 v{rk}, 8, v{t0}
        v_lshl_add_u32 v{rk}, v{t1}, 4, v{rk}
        v_add_u32 v{rk}, s3, v{rk}
        v_lshlrev_b32 v{rv}, 10, v{t1}
        v_lshl_add_u32 v{rv}, v{t0}, 4, v{rv}
        v_add_u32 v{rv}, s3, v{rv}
        """)
    def addr_wo(self, r, tmp):
        self.a(f"""
        s_lshl_b32 s3, s{sG}, 19
        s_lshl_b32 s{sT0}, s{sWV}, 17
        s_add_u32 s3, s3, s{sT0}
        s_lshl_b32 s{sT0}, s{sS}, 7
        s_add_u32 s3, s3, s{sT0}
        v_lshrrev_b32 v{r}, 3, v0
        v_lshlrev_b32 v{r}, 13, v{r}
        v_and_b32 v{tmp}, 7, v0
        v_lshl_add_u32 v{r}, v{tmp}, 4, v{r}
        v_add_u32 v{r}, s3, v{r}
        """)

    def srds(self):
        a = self.a
        a("s_waitcnt lgkmcnt(0)")
        for srd, p, size in ((SWQ, sPTR+4, 4194304), (SWS, sWSP, WS_SIZE), (SK, sPTR, 33554432), (SV, sPTR+2, 33554432), (SWO, sPTR+6, 4194304)):
            a(f"s_mov_b32 s{srd}, s{p}")
            a(f"s_and_b32 s{srd+1}, s{p+1}, 0xffff")
            a(f"s_mov_b32 s{srd+2}, {size}")
            a(f"s_mov_b32 s{srd+3}, 0x20000")

    def issue_wq(self, r):
        a = self.a; lm = self.cfg.LOADMOD
        for blk in range(2):
            for e in range(8):
                a(f"s_mov_b32 s{sOFF}, {(32*blk+e)*8192}")
                a(f"buffer_load_dwordx4 {vr(Z(1+blk)+4*e,4)}, v{r}, s[{SWQ}:{SWQ+3}], s{sOFF} offen{lm}")
    def issue_kv(self, rk, rv):
        a = self.a; lm = self.cfg.LOADMOD
        a(f"s_lshl_b32 s3, s{sTY}, 15")
        a(f"s_lshl_b32 s{sT0}, s{sWV}, 13")
        a(f"s_add_u32 s3, s3, s{sT0}")
        for tile in range(2):
            for step in range(4):
                idx = tile*4+step
                a(f"s_add_u32 m0, s3, {idx*1024}")
                a(f"s_mov_b32 s{sOFF}, {tile*4096+step*64}")
                a(f"buffer_load_dwordx4 v{rk}, s[{SK}:{SK+3}], s{sOFF} offen{lm} lds")
        for e in range(8):
            row = e if e < 4 else 16 + e - 4
            a(f"s_mov_b32 s{sOFF}, {row*256}")
            a(f"buffer_load_dwordx4 {vr(Z(3)+4*e,4)}, v{rv}, s[{SV}:{SV+3}], s{sOFF} offen{lm}")
    def issue_wo(self, r):
        a = self.a; lm = self.cfg.LOADMOD
        for blk in range(2):
            for e in range(8):
                a(f"s_mov_b32 s{sOFF}, {(64*blk+e)*1024}")
                a(f"buffer_load_dwordx4 {vr(Z(4+blk)+4*e,4)}, v{r}, s[{SWO}:{SWO+3}], s{sOFF} offen{lm}")

    def addrs(self):
        a = self.a
        a(f"""
        v_lshrrev_b32 v{t2}, 5, v0          ; half
        v_and_b32 v{t3}, 31, v0             ; gi32
        v_lshrrev_b32 v{t4}, 3, v{t0}       ; lo4>>3
        v_lshlrev_b32 v{aXf}, 4, v{t1}
        v_add_u32 v{aXf}, {XL}, v{aXf}
        s_lshl_b32 s{sT0}, s{sGI}, 14
        s_lshl_b32 s{sT1}, s{sWV}, 12
        s_add_u32 s{sT0}, s{sT0}, s{sT1}
        s_lshl_b32 s{sT1}, s{sS}, 9
        s_add_u32 s{sT1}, s{sT1}, s{sT0}    ; + s*512
        v_and_b32 v{t5}, 1, v{t1}           ; t&1
        v_lshlrev_b32 v{aQst}, 5, v{t0}
        v_lshl_add_u32 v{aQst}, v{t5}, 4, v{aQst}
        v_add_u32 v{aQst}, s{sT1}, v{aQst}
        v_lshlrev_b32 v{aOst}, 5, v{t0}
        v_lshl_add_u32 v{aOst}, v{t1}, 3, v{aOst}
        v_add_u32 v{aOst}, s{sT1}, v{aOst}
        v_lshlrev_b32 v{aG}, 9, v{t2}
        v_lshl_add_u32 v{aG}, v{t3}, 4, v{aG}
        v_add_u32 v{aG}, s{sT0}, v{aG}
        s_lshl_b32 s{sT0}, s{sTY}, 15
        s_lshl_b32 s{sT1}, s{sWV}, 13
        s_add_u32 s{sT0}, s{sT0}, s{sT1}
        v_lshlrev_b32 v{aKf}, 4, v0
        v_add_u32 v{aKf}, s{sT0}, v{aKf}
        v_lshrrev_b32 v{t6}, 2, v{t0}       ; lo4>>2
        v_lshlrev_b32 v{aQf}, 8, v{t6}
        v_lshl_add_u32 v{aQf}, v{t1}, 4, v{aQf}
        v_add_u32 v{aQf}, {QL}, v{aQf}
        s_lshl_b32 s{sT0}, s{sWV}, 11
        s_add_u32 s{sT0}, s{sT0}, {ORED}
        v_lshlrev_b32 v{aOW}, 2, v0
        v_add_u32 v{aOW}, s{sT0}, v{aOW}
        s_lshl_b32 s{sT0}, s{sWV}, 2
        s_add_u32 s{sT0}, s{sT0}, {ML}
        v_lshlrev_b32 v{aMw}, 4, v{t6}
        v_add_u32 v{aMw}, s{sT0}, v{aMw}
        v_lshlrev_b32 v{aLw}, 4, v{t1}
        v_add_u32 v{aLw}, s{sT0}, v{aLw}
        v_add_u32 v{aLw}, 64, v{aLw}
        s_lshl_b32 s{sT0}, s{sGI}, 2
        s_add_u32 s{sT0}, s{sT0}, s{sWV}
        s_lshl_b32 s{sT0}, s{sT0}, 7
        s_add_u32 s{sT0}, s{sT0}, {AUXO}
        v_add_u32 v{aAo}, v0, v{t2}
        v_and_b32 v{aAo}, 7, v{aAo}
        v_lshlrev_b32 v{aAo}, 3, v{aAo}
        v_add_u32 v{aAo}, s{sT0}, v{aAo}
        s_lshl_b32 s{sT1}, s{sS}, 3
        s_add_u32 s{sT0}, s{sT0}, s{sT1}
        v_mov_b32 v{aAost}, s{sT0}
        s_lshl_b32 s{sT0}, s{sGI}, 7
        s_add_u32 s{sT0}, s{sT0}, {AUXQ}
        v_and_b32 v{aAq}, 7, v0
        v_lshlrev_b32 v{aAq}, 3, v{aAq}
        v_add_u32 v{aAq}, s{sT0}, v{aAq}
        s_lshl_b32 s{sT0}, s{sWV}, 8
        v_lshlrev_b32 v{aPw}, 3, v{t3}
        v_lshl_add_u32 v{aPw}, v{t2}, 2, v{aPw}
        v_add_u32 v{aPw}, s{sT0}, v{aPw}
        v_add_u32 v{aPw}, {QL}, v{aPw}
        v_and_b32 v{t7}, 1, v{t6}
        v_lshl_add_u32 v{aOf}, v{t1}, 1, v{t7}
        v_lshlrev_b32 v{aOf}, 4, v{aOf}
        v_add_u32 v{aOf}, s{sT0}, v{aOf}
        v_add_u32 v{aOf}, {OL}, v{aOf}
        s_lshl_b32 s{sT0}, s{sWV}, 9
        s_add_u32 s{sT0}, s{sT0}, {RED}
        v_lshlrev_b32 v{aRw}, 8, v{t4}
        v_and_b32 v{t7}, 7, v0
        v_lshl_add_u32 v{aRw}, v{t7}, 5, v{aRw}
        v_lshl_add_u32 v{aRw}, v{t2}, 4, v{aRw}
        v_add_u32 v{aRw}, s{sT0}, v{aRw}
        v_lshlrev_b32 v{t7}, 4, v0
        v_add_u32 v{t7}, {TRASH}, v{t7}
        v_cmp_eq_u32 vcc, v{t5}, v{t4}
        v_cndmask_b32 v{aRw}, v{t7}, v{aRw}, vcc
        s_lshl_b32 s{sT0}, s{sB}, 3
        s_add_u32 s{sT0}, s{sT0}, s{sS}
        s_lshl_b32 s{sT0}, s{sT0}, 11
        s_add_u32 s{sT0}, s{sT0}, {XB}
        v_lshlrev_b32 v{aXg}, 4, v0
        v_add_u32 v{aXg}, s{sT0}, v{aXg}
        s_lshl_b32 s{sT1}, s{sG}, 8
        s_add_u32 s{sT0}, s{sT0}, s{sT1}
        v_lshrrev_b32 v{t7}, 2, v0
        v_lshlrev_b32 v{aXst}, 4, v{t7}
        v_add_u32 v{aXst}, s{sT0}, v{aXst}
        v_and_b32 v{aRr}, 3, v0
        v_lshlrev_b32 v{aRr}, 9, v{aRr}
        v_lshl_add_u32 v{aRr}, v{t7}, 4, v{aRr}
        v_add_u32 v{aRr}, {RED}, v{aRr}
        v_lshl_add_u32 v{aXl}, v{t0}, 2, v{t1}
        v_lshlrev_b32 v{aXl}, 1, v{aXl}
        v_add_u32 v{aXl}, {XL}, v{aXl}
        s_lshl_b32 s{sT0}, s{sWV}, 6
        s_add_u32 s{sT0}, s{sT0}, {ORED}
        v_lshlrev_b32 v{aORr}, 9, v{t1}
        v_lshl_add_u32 v{aORr}, v{t0}, 2, v{aORr}
        v_add_u32 v{aORr}, s{sT0}, v{aORr}
        s_lshl_b32 s{sT0}, s{sWV}, 4
        s_add_u32 s{sT0}, s{sT0}, {ML}
        v_mov_b32 v{aMLr}, s{sT0}
        """)

    def perm(self, zs, zd, vm_after):
        a = self.a
        for p in range(4):
            a(f"s_waitcnt vmcnt({vm_after + 6 - 2*p})")
            for w in range(4):
                lo = zs + 8*p + w; hi = zs + 8*p + 4 + w
                a(f"v_perm_b32 v{zd+8*w+p}, v{hi}, v{lo}, s{sSELLO}")
                a(f"v_perm_b32 v{zd+8*w+4+p}, v{hi}, v{lo}, s{sSELHI}")

    def read_mode(self):
        a = self.a
        if not self.cfg.FAST: return
        a(f"v_mov_b32 v{t0}, {MODE}")
        a(f"ds_read_b32 v{t0}, v{t0}")
        a("s_waitcnt lgkmcnt(0)")
        a(f"v_readfirstlane_b32 s{sMODE}, v{t0}")

    def gemv(self, addr, off0, off1, W0, W1, T):
        a = self.a
        a(f"ds_read_b128 {vr(T,4)}, v{addr} offset:{off0}")
        a(f"ds_read_b128 {vr(T+4,4)}, v{addr} offset:{off1}")
        a("s_waitcnt lgkmcnt(1)")
        for j in range(8):
            a(f"v_mfma_f32_16x16x32_bf16 {vr(S1+4*j,4)}, {vr(T,4)}, {vr(W0+4*j,4)}, 0")
        a("s_waitcnt lgkmcnt(0)")
        for j in (0, 4, 1, 5, 2, 6, 3, 7):
            a(f"v_mfma_f32_16x16x32_bf16 {vr(S1+4*j,4)}, {vr(T+4,4)}, {vr(W1+4*j,4)}, {vr(S1+4*j,4)}")

    def qproj(self, l, T, xoff):
        a = self.a
        self.gemv(aXf, xoff, xoff + 64, WQ0, WQ1, T)
        for k in range(4):
            a(f"v_cndmask_b32 v{T+8+k}, v{S1+4*k}, v{S1+16+4*k}, s[{sMODD}:{sMODD+1}]")
        a("s_mov_b32 exec_hi, 0")
        self.store(f"buffer_store_dwordx4 {vr(T+8,4)}, v{aQst}, {WSR}, s{sOFF} offen", 'grp')
        a("s_mov_b32 exec_hi, -1")

    def cs_pass(self, ty, T):
        a = self.a
        for k in range(4): a(f"v_mov_b32 v{T+k}, 0x3f803f80")
        for j in range(8):
            a(f"v_mfma_f32_16x16x32_bf16 {vr(S1+4*j,4)}, {vr(T,4)}, {vr(WQ0+4*j,4)}, 0")
        for j in (0, 4, 1, 5, 2, 6, 3, 7):
            a(f"v_mfma_f32_16x16x32_bf16 {vr(S1+4*j,4)}, {vr(T,4)}, {vr(WQ1+4*j,4)}, {vr(S1+4*j,4)}")
        a(f"s_mov_b32 s{sOFF2}, {LB(ty)+CSB}")
        for k in range(4):
            a(f"v_cndmask_b32 v{T+12+k}, v{S1+4*k}, v{S1+16+4*k}, s[{sMODD}:{sMODD+1}]")
        a("s_mov_b32 exec_hi, 0")
        self.store(f"buffer_store_dwordx4 {vr(T+12,4)}, v{aQst}, {WSR}, s{sOFF2} offen", 'dev')
        a("s_mov_b32 exec_hi, -1")

    def kfrags(self):
        for i in range(8):
            self.a(f"ds_read_b128 {vr(S1+4*i,4)}, v{aKf} offset:{i*1024}")

    def attention(self, T):
        a = self.a; cfg = self.cfg
        for st in range(4):
            a(f"ds_read_b128 {vr(T+4*st,4)}, v{aQf} offset:{st*64}")
        for st in range(4):
            a(f"s_waitcnt lgkmcnt({3-st})")
            for tile in range(2):
                acc = T + 16 + 4*tile
                c = "0" if st == 0 else vr(acc, 4)
                a(f"v_mfma_f32_16x16x32_bf16 {vr(acc,4)}, {vr(S1+16*tile+4*st,4)}, {vr(T+4*st,4)}, {c}")
        sc = [T + 16 + i for i in range(8)]
        if cfg.ROUND_S:
            for i in range(4):
                a(f"v_cvt_pk_bf16_f32 v{T+i}, v{sc[2*i]}, v{sc[2*i+1]}")
            for i in range(4):
                a(f"v_lshlrev_b32 v{sc[2*i]}, 16, v{T+i}")
                a(f"v_and_b32 v{sc[2*i+1]}, 0xffff0000, v{T+i}")
            for i in range(8):
                a(f"v_mul_f32 v{sc[i]}, s{sSCALE}, v{sc[i]}")
            for i in range(4):
                a(f"v_cvt_pk_bf16_f32 v{T+i}, v{sc[2*i]}, v{sc[2*i+1]}")
            for i in range(4):
                a(f"v_lshlrev_b32 v{sc[2*i]}, 16, v{T+i}")
                a(f"v_and_b32 v{sc[2*i+1]}, 0xffff0000, v{T+i}")
            a(f"s_mov_b32 s{sT0}, s{sLOG2E}")
        else:
            a(f"s_mov_b32 s{sT0}, {hex(f2u(128 ** -0.5 * 1.4426950408889634))}")
        m = T + 4; tmp = T + 5
        a(f"v_max3_f32 v{m}, v{sc[0]}, v{sc[1]}, v{sc[2]}")
        a(f"v_max3_f32 v{tmp}, v{sc[3]}, v{sc[4]}, v{sc[5]}")
        a(f"v_max3_f32 v{m}, v{m}, v{sc[6]}, v{sc[7]}")
        a(f"v_max_f32 v{m}, v{m}, v{tmp}")
        self.redrows("v_max_f32", m, tmp)
        a(f"v_mul_f32 v{m}, s{sT0}, v{m}")
        for i in range(8):
            a(f"v_fma_f32 v{sc[i]}, v{sc[i]}, s{sT0}, -v{m}")
        a(f"ds_write_b32 v{aMw}, v{m}")
        for i in range(8):
            a(f"v_exp_f32 v{sc[i]}, v{sc[i]}")
        for i in range(4):
            a(f"v_cvt_pk_bf16_f32 v{T+24+i}, v{sc[2*i]}, v{sc[2*i+1]}")
        a(f"v_mfma_f32_16x16x32_bf16 {vr(T+8,4)}, {vr(T+24,4)}, {vr(T+28,4)}, 0")
        for j in range(8):
            a(f"v_mfma_f32_16x16x32_bf16 {vr(S1+4*j,4)}, {vr(T+24,4)}, {vr(VF+4*j,4)}, 0")
        a(f"ds_write_b32 v{aLw}, v{T+8}")
        for jp in range(4):
            a(f"ds_write2st64_b32 v{aOW}, v{S1+8*jp}, v{S1+8*jp+4} offset0:{2*jp} offset1:{2*jp+1}")

    def ones(self, T):
        for k in range(4): self.a(f"v_mov_b32 v{T+28+k}, 0x3f803f80")

    def ogather_oproj(self, l, T):
        a = self.a
        a(f"s_mov_b32 s{sOFF}, {LB(l)}")
        a(f"s_mov_b32 s{sOFF2}, {LB(l)+OB}")
        ml = T + 16
        self.poll([f"buffer_load_dwordx2 {vr(ml,2)}, v{aAo}, {WSR}, s{sOFF} offen sc1"], [ml, ml+1], t0)
        self.poll(self.bulk(T, sOFF2), list(range(T, T+16)), t0)
        self.stamp(5 + 8*l)
        mx = T + 18; w = T + 19; ls = T + 20
        a(f"v_mov_b32 v{mx}, v{ml}")
        self.red8("v_max_f32", mx)
        a(f"v_sub_f32 v{w}, v{ml}, v{mx}")
        a(f"v_exp_f32 v{w}, v{w}")
        a(f"v_mul_f32 v{ls}, v{w}, v{ml+1}")
        self.red8("v_add_f32", ls)
        a(f"v_rcp_f32 v{ls}, v{ls}")
        a(f"v_mul_f32 v{w}, v{w}, v{ls}")
        acc = T + 24
        for e in range(4):
            for k in range(4):
                op = "v_mul_f32_dpp" if e == 0 else "v_fmac_f32_dpp"
                a(f"{op} v{acc+k}, v{w}, v{T+4*e+k} row_newbcast:{2*e} {DPPF}")
        self.halves(acc)
        a(f"v_cvt_pk_bf16_f32 v{acc}, v{acc}, v{acc+1}")
        a(f"ds_write_b32 v{aPw}, v{acc} offset:{OL-QL}")
        a("s_waitcnt lgkmcnt(0)")
        self.gemv(aOf, 0, 128, WO0, WO1, T)
        for k in range(4):
            a(f"v_cndmask_b32 v{T+8+k}, v{S1+4*k}, v{S1+16+4*k}, s[{sMHI}:{sMHI+1}]")
        a(f"ds_write_b128 v{aRw}, {vr(T+8,4)}")

    def combine(self, l, T):
        a = self.a
        a(f"ds_read_b128 {vr(T+8,4)}, v{aMLr}")
        a(f"ds_read_b128 {vr(T+12,4)}, v{aMLr} offset:64")
        for v in range(4):
            a(f"ds_read2st64_b32 {vr(T+2*v,2)}, v{aORr} offset0:{8*v} offset1:{8*v+1}")
        M = T + 16
        a("s_waitcnt lgkmcnt(5)")
        a(f"v_max3_f32 v{M}, v{T+8}, v{T+9}, v{T+10}")
        a(f"v_max_f32 v{M}, v{M}, v{T+11}")
        for v in range(4): a(f"v_sub_f32 v{T+8+v}, v{T+8+v}, v{M}")
        for v in range(4): a(f"v_exp_f32 v{T+8+v}, v{T+8+v}")
        a("s_waitcnt lgkmcnt(0)")
        o = T + 18
        a(f"v_mul_f32 v{M+1}, v{T+8}, v{T+12}")
        a(f"v_mul_f32 v{o}, v{T+8}, v{T}")
        a(f"v_mul_f32 v{o+1}, v{T+8}, v{T+1}")
        for v in range(1, 4):
            a(f"v_fmac_f32 v{M+1}, v{T+8+v}, v{T+12+v}")
            a(f"v_fmac_f32 v{o}, v{T+8+v}, v{T+2*v}")
            a(f"v_fmac_f32 v{o+1}, v{T+8+v}, v{T+2*v+1}")
        self.store(f"buffer_store_dwordx2 {vr(o,2)}, v{aOst}, {WSR}, s{sOFF2} offen", 'grp')
        a("s_mov_b64 exec, 1")
        self.store(f"buffer_store_dwordx2 {vr(M,2)}, v{aAost}, {WSR}, s{sOFF} offen", 'grp')
        a("s_mov_b64 exec, -1")

    def xpublish(self, l, T):
        a = self.a
        a(f"ds_read_b128 {vr(T,4)}, v{aRr}")
        a(f"ds_read_b128 {vr(T+4,4)}, v{aRr} offset:256")
        a(f"s_mov_b32 s{sOFF}, {LB(l)}")
        a("s_waitcnt lgkmcnt(0)")
        for k in range(4): a(f"v_add_f32 v{T+k}, v{T+k}, v{T+4+k}")
        for k in range(4): a(f"v_add_f32_dpp v{T+k}, v{T+k}, v{T+k} quad_perm:[1,0,3,2] {DPPF}")
        for k in range(4): a(f"v_add_f32_dpp v{T+k}, v{T+k}, v{T+k} quad_perm:[2,3,0,1] {DPPF}")
        a(f"s_mov_b64 exec, s[{sM2}:{sM2+1}]")
        self.store(f"buffer_store_dwordx4 {vr(T,4)}, v{aXst}, {WSR}, s{sOFF} offen", 'dev')
        a("s_mov_b64 exec, -1")

    def xgather(self, lprev):
        a = self.a
        T = S1
        a(f"ds_read_u16 v{T+10}, v{aXl}")
        a(f"s_mov_b32 s{sOFF}, {LB(lprev)}")
        a("s_waitcnt lgkmcnt(0)")
        a(f"v_lshlrev_b32 v{T+10}, 16, v{T+10}")
        self.poll([f"buffer_load_dwordx4 {vr(T+4*e,4)}, v{aXg}, {WSR}, s{sOFF} offen offset:{e*1024} sc1" for e in range(2)],
                  list(range(T, T+8)), t0)
        for k in range(4):
            a(f"v_add_f32 v{T+k}, v{T+k}, v{T+4+k}")
        self.halves(T)
        a(f"v_permlane16_swap_b32 v{T}, v{T+1}")
        a(f"v_add_f32 v{T}, v{T}, v{T+1}")
        self.bf16r(T, T+1)
        a(f"v_add_f32 v{T}, v{T}, v{T+10}")
        a(f"v_cvt_pk_bf16_f32 v{T+9}, v{T}, v{T}")

    def stats(self, l):
        a = self.a
        T = S1
        a(f"v_mov_b32 v{t1}, {hex(f2u(-1.0/64))}")
        a(f"v_lshlrev_b32 v{T+8}, 16, v{T+9}")
        a(f"v_mov_b32 v{T}, v{T+8}")
        self.red64("v_add_f32", T, T+2)
        a(f"v_fma_f32 v{T+1}, v{T}, v{t1}, v{T+8}")
        a(f"v_mul_f32 v{T+1}, v{T+1}, v{T+1}")
        self.red64("v_add_f32", T+1, T+2)
        a(f"s_lshl_b32 s{sT0}, s{sS}, 3")
        a(f"s_lshl_b32 s{sT1}, s{sGI}, 7")
        a(f"s_add_u32 s{sT0}, s{sT0}, s{sT1}")
        a(f"s_add_u32 s{sT0}, s{sT0}, {AUXQ}")
        a(f"v_mov_b32 v{T+2}, s{sT0}")
        a(f"s_mov_b32 s{sOFF}, {LB(l)}")
        a("s_mov_b64 exec, 1")
        self.store(f"buffer_store_dwordx2 {vr(T,2)}, v{T+2}, {WSR}, s{sOFF} offen", 'grp')
        a("s_mov_b64 exec, -1")

    def prefetch(self, l):
        if not self.cfg.PREFETCH: return
        a = self.a
        a(f"s_mov_b32 s{sOFF}, {LB(l)}")
        a(f"s_mov_b32 s{sOFF2}, {LB(l)+OB}")
        a(f"buffer_load_dwordx2 {vr(DUM,2)}, v{aAq}, {WSR}, s{sOFF} offen sc1")
        for e in range(4): a(f"buffer_load_dwordx4 {vr(DUM,4)}, v{aG}, {WSR}, s{sOFF} offen offset:{e*1024} sc1")
        a(f"buffer_load_dwordx2 {vr(DUM,2)}, v{aAo}, {WSR}, s{sOFF} offen sc1")
        for e in range(4): a(f"buffer_load_dwordx4 {vr(DUM,4)}, v{aG}, {WSR}, s{sOFF2} offen offset:{e*1024} sc1")

    def C_layer(self, l):
        a = self.a
        a.c(f"======== layer {l} compute role")
        T = Z(5)
        a(f"s_mov_b32 s{sOFF}, {LB(l)+QB}")
        a("s_barrier")
        self.stamp(1 + 8*l)
        self.qproj(l, T, 0)
        self.stamp(2 + 8*l)
        self.kfrags()
        self.ones(T)
        a("s_waitcnt lgkmcnt(0)")
        a("s_barrier")
        self.stamp(3 + 8*l)
        self.attention(T)
        a("s_waitcnt lgkmcnt(0)")
        a("s_barrier")
        self.stamp(4 + 8*l)
        self.ogather_oproj(l, T)
        a("s_waitcnt lgkmcnt(0)")
        a("s_barrier")
        self.stamp(6 + 8*l)

    def M_layer(self, l, getcs, xw):
        a = self.a
        T = Z(5)
        a.c(f"======== layer {l} comm role")
        self.prefetch(l)
        if getcs:
            a(f"s_mov_b32 s{sOFF}, {LB(l%2)+CSB}")
            self.poll(self.bulk(T, sOFF), list(range(T, T+16)), t0)
            self.sum4(T)
            a(f"v_mov_b32 v{cs0}, v{T}")
            a(f"v_mov_b32 v{cs1}, v{T+1}")
        sk = a.newlabel("Lsk")
        a(f"s_cmp_lg_u32 s{sWV}, {xw}")
        a(f"s_cbranch_scc1 {sk}")
        self.xgather(l - 1)
        a(f"ds_write_b16 v{aXl}, v{S1+9}")
        a("s_waitcnt lgkmcnt(0)")
        a.label(sk)
        a("s_barrier")
        self.stamp(1 + 8*l)
        sk = a.newlabel("Lsk")
        a(f"s_cmp_lg_u32 s{sWV}, {xw}")
        a(f"s_cbranch_scc1 {sk}")
        self.stats(l)
        a.label(sk)
        a(f"s_mov_b32 s{sOFF}, {LB(l)}")
        st = T + 16
        self.poll([f"buffer_load_dwordx2 {vr(st,2)}, v{aAq}, {WSR}, s{sOFF} offen sc1"], [st, st+1], t0)
        mean = T + 18; d = T + 19; tmp = T + 20
        a(f"v_mov_b32 v{mean}, v{st}")
        self.red8("v_add_f32", mean)
        a(f"v_mul_f32 v{mean}, {hex(f2u(1.0/512))}, v{mean}")
        a(f"v_mul_f32 v{d}, {hex(f2u(1.0/64))}, v{st}")
        a(f"v_sub_f32 v{d}, v{d}, v{mean}")
        a(f"v_mul_f32 v{d}, v{d}, v{d}")
        a(f"v_mul_f32 v{d}, 0x42800000, v{d}")
        a(f"v_add_f32 v{d}, v{d}, v{st+1}")
        self.red8("v_add_f32", d)
        a(f"v_mul_f32 v{d}, {hex(f2u(1.0/512))}, v{d}")
        self.ln_den(mean, d, tmp)
        a(f"v_mul_f32 v{T+21}, v{mean}, v{cs0}")
        a(f"v_mul_f32 v{T+22}, v{mean}, v{cs1}")
        self.stamp(2 + 8*l)
        self.poll(self.bulk(T, sOFF), list(range(T, T+16)), t0)
        self.sum4(T)
        a(f"v_sub_f32 v{T}, v{T}, v{T+21}")
        a(f"v_sub_f32 v{T+1}, v{T+1}, v{T+22}")
        a(f"v_mul_f32 v{T}, v{T}, v{d}")
        a(f"v_mul_f32 v{T+1}, v{T+1}, v{d}")
        a(f"v_cvt_pk_bf16_f32 v{T}, v{T}, v{T+1}")
        a(f"ds_write_b32 v{aPw}, v{T}")
        a("s_waitcnt lgkmcnt(0)")
        a("s_barrier")
        self.stamp(3 + 8*l)
        a(f"s_mov_b32 s{sOFF2}, {LB(l)+OB}")
        a("s_barrier")
        self.stamp(4 + 8*l)
        self.combine(l, S1)
        self.stamp(5 + 8*l)
        a("s_barrier")
        self.stamp(6 + 8*l)
        sk = a.newlabel("Lsk")
        a(f"s_cmp_lg_u32 s{sWV}, 0")
        a(f"s_cbranch_scc1 {sk}")
        self.xpublish(l, S1)
        self.stamp(7 + 8*l)
        a.label(sk)

    def A_start_L0(self):
        a = self.a
        a.c("======== A waves: loads + layer 0")
        a(f"s_setprio {P_LA}")
        self.issue_wq(S1)
        a("s_barrier")
        self.issue_kv(S1+1, S1+2)
        self.issue_wo(S1+3)
        a(f"s_setprio {P_CRIT}")
        self.addrs()
        self.perm(Z(1), Z(0), 40)
        self.perm(Z(2), Z(1), 32)
        self.stamp(8)
        T = Z(2)
        self.flag_wait(0, 4)
        self.stamp(1)
        self.read_mode()
        a(f"s_mov_b32 s{sOFF}, {LB(0)+QB}")
        self.qproj(0, T, 128)
        self.stamp(2)
        self.cs_pass(0, T)
        a("s_waitcnt vmcnt(26)")
        self.stamp(16)
        self.kfrags()
        self.perm(Z(3), Z(2), 18)
        self.stamp(24)
        T = Z(3)
        self.ones(T)
        self.flag_wait(4, 1)
        self.stamp(3)
        self.attention(T)
        self.flag_add(8)
        a(f"s_mov_b32 s{sOFF}, {LB(0)}")
        a(f"s_mov_b32 s{sOFF2}, {LB(0)+OB}")
        self.flag_wait(8, 4)
        self.stamp(4)
        self.combine(0, S1)
        self.perm(Z(4), Z(3), 12)
        self.perm(Z(5), Z(4), 4)
        self.stamp(32)
        T = Z(5)
        self.ogather_oproj(0, T)
        self.flag_add(12)
        sk = a.newlabel("Lsk")
        a(f"s_cmp_lg_u32 s{sWV}, 0")
        a(f"s_cbranch_scc1 {sk}")
        self.flag_wait(12, 4)
        self.stamp(6)
        self.xpublish(0, S1)
        self.stamp(7)
        a.label(sk)

    def B_start(self):
        a = self.a
        T = Z(0)
        a.c("======== B waves: clean, handshake, L0 q gather (wave 0), loads")
        a(f"s_setprio {P_CRIT}")
        l0 = a.newlabel("Lb")
        a(f"""
        s_lshl_b32 s3, s{sB}, 8
        s_load_dword s{sTAG}, s[{sWSP}:{sWSP+1}], s3
        s_lshl_b32 s{sT0}, s{sB}, 10
        v_lshlrev_b32 v{T+8}, 4, v0
        v_add_u32 v{T+8}, s{sT0}, v{T+8}
        s_lshl_b32 s{sT1}, s{sS}, 7
        s_add_u32 s{sT0}, s{sT0}, s{sT1}
        v_lshl_add_u32 v{T+9}, v{t0}, 2, v{t1}
        v_lshlrev_b32 v{T+9}, 1, v{T+9}
        v_add_u32 v{T+9}, s{sT0}, v{T+9}
        s_cmp_lg_u32 s{sWV}, 0
        s_cbranch_scc1 {l0}
        global_load_dwordx4 {vr(T+12,4)}, v{T+8}, s[{sXP}:{sXP+1}]
        global_load_ushort v{T+16}, v{T+9}, s[{sXP}:{sXP+1}]
        """)
        a.label(l0)
        a(f"""
        v_mov_b32 v{T}, -1
        v_mov_b32 v{T+1}, -1
        v_mov_b32 v{T+2}, -1
        v_mov_b32 v{T+3}, -1
        s_add_u32 s{sOFF}, s{sWV}, 1
        s_lshl_b32 s{sOFF}, s{sOFF}, 21         ; LB(wv)
        s_lshl_b32 s{sT0}, s{sGI}, 14
        s_lshl_b32 s{sT1}, s{sS}, 9
        s_add_u32 s{sT0}, s{sT0}, s{sT1}
        v_lshrrev_b32 v{T+4}, 5, v0
        v_lshlrev_b32 v{T+4}, 12, v{T+4}
        v_and_b32 v{T+5}, 31, v0
        v_lshl_add_u32 v{T+4}, v{T+5}, 4, v{T+4}
        v_add_u32 v{T+4}, s{sT0}, v{T+4}
        v_add_u32 v{T+5}, 0x2000, v{T+4}
        """)
        for reg in (QB, OB, CSB):
            a(f"s_add_u32 s{sT1}, s{sOFF}, {reg}")
            a(f"buffer_store_dwordx4 {vr(T,4)}, v{T+4}, {WSR}, s{sT1} offen sc1")
            a(f"buffer_store_dwordx4 {vr(T,4)}, v{T+5}, {WSR}, s{sT1} offen sc1")
        a(f"""
        v_mov_b32 v{T+20}, 0
        v_mov_b32 v{T+21}, 0
        v_mov_b32 v{T+22}, 0
        v_mov_b32 v{T+23}, 0
        v_mov_b32 v{T+24}, {FLG}
        ds_write_b128 v{T+24}, {vr(T+20,4)}
        s_waitcnt lgkmcnt(0)
        s_barrier
        """)
        self.addrs()
        a(f"""
        s_mov_b64 exec, s[{sM2}:{sM2+1}]
        buffer_store_dwordx4 {vr(T,4)}, v{aXst}, {WSR}, s{sOFF} offen sc1
        s_mov_b64 exec, -1
        s_lshl_b32 s{sT0}, s{sGI}, 9
        s_lshl_b32 s{sT1}, s{sS}, 3
        s_add_u32 s{sT0}, s{sT0}, s{sT1}
        s_add_u32 s{sT0}, s{sT0}, {AUXO}
        v_lshlrev_b32 v{T+6}, 7, v0
        v_add_u32 v{T+6}, s{sT0}, v{T+6}
        s_lshl_b32 s{sT0}, s{sGI}, 7
        s_add_u32 s{sT0}, s{sT0}, s{sT1}
        s_add_u32 s{sT0}, s{sT0}, {AUXQ}
        v_mov_b32 v{T+7}, s{sT0}
        v_cmp_eq_u32 vcc, 4, v0
        v_cndmask_b32 v{T+6}, v{T+6}, v{T+7}, vcc
        s_mov_b64 exec, 31
        buffer_store_dwordx2 {vr(T,2)}, v{T+6}, {WSR}, s{sOFF} offen sc1
        s_mov_b64 exec, -1
        s_add_u32 s{sTAG}, s{sTAG}, 1
        s_cmp_lg_u32 s{sWV}, 0
        s_cbranch_scc1 L_b123
        """)
        a.c("---- wave 0: LN of input row")
        X = T + 32
        a("s_waitcnt vmcnt(8)")
        for i in range(4):
            a(f"v_lshlrev_b32 v{X+2*i}, 16, v{T+12+i}")
            a(f"v_and_b32 v{X+2*i+1}, 0xffff0000, v{T+12+i}")
        mean = T + 20; d = T + 21; tmp = T + 22
        a(f"v_add_f32 v{mean}, v{X}, v{X+1}")
        for i in range(2, 8): a(f"v_add_f32 v{mean}, v{mean}, v{X+i}")
        self.red64("v_add_f32", mean, tmp)
        a(f"v_mul_f32 v{mean}, {hex(f2u(1.0/512))}, v{mean}")
        for i in range(8): a(f"v_sub_f32 v{X+i}, v{X+i}, v{mean}")
        a(f"v_mul_f32 v{d}, v{X}, v{X}")
        for i in range(1, 8): a(f"v_fmac_f32 v{d}, v{X+i}, v{X+i}")
        self.red64("v_add_f32", d, tmp)
        a(f"v_mul_f32 v{d}, {hex(f2u(1.0/512))}, v{d}")
        self.ln_den(mean, d, tmp)
        a(f"ds_write_b16 v{aXl}, v{T+16}")
        a(f"v_lshlrev_b32 v{T+17}, 16, v{T+16}")
        a(f"v_sub_f32 v{T+17}, v{T+17}, v{mean}")
        self.bf16r(T+17, tmp)
        a(f"v_mul_f32 v{T+17}, v{T+17}, v{d}")
        a(f"v_cvt_pk_bf16_f32 v{T+17}, v{T+17}, v{T+17}")
        a(f"ds_write_b16 v{aXl}, v{T+17} offset:128")
        a.c("---- handshake")
        a(f"""
        s_lshl_b32 s{sT0}, s{sGI}, 3
        s_add_u32 s{sT0}, s{sT0}, s{sS}
        s_lshl_b32 s{sT0}, s{sT0}, 6
        s_add_u32 s{sT0}, s{sT0}, {HS}
        v_mov_b32 v{T+4}, s{sT0}
        v_mov_b32 v{T+10}, s{sTAG}
        v_mov_b32 v{T+11}, s{sXCC}
        v_and_b32 v{T+5}, 7, v0
        s_lshl_b32 s{sT0}, s{sGI}, 3
        v_add_u32 v{T+6}, s{sT0}, v{T+5}
        s_lshl_b32 s{sT0}, s{sB}, 6
        s_add_u32 s{sT0}, s{sT0}, s{sS}
        v_lshlrev_b32 v{T+7}, 3, v{T+5}
        v_add_u32 v{T+7}, s{sT0}, v{T+7}
        v_and_b32 v{T+5}, 8, v0
        v_cmp_eq_u32 vcc, 0, v{T+5}
        v_cndmask_b32 v{T+6}, v{T+7}, v{T+6}, vcc
        v_lshlrev_b32 v{T+6}, 6, v{T+6}
        v_add_u32 v{T+6}, {HS}, v{T+6}
        s_waitcnt vmcnt(0)
        """)
        self.stamp(8)
        a(f"""
        s_mov_b64 exec, 1
        buffer_store_dwordx2 {vr(T+10,2)}, v{T+4}, {WSR}, 0 offen sc1
        s_mov_b64 exec, -1
        s_mov_b32 s{sCNT}, 0
        s_setprio {P_POLL}
        L_hs:
        buffer_load_dwordx2 {vr(T+8,2)}, v{T+6}, {WSR}, 0 offen sc1
        s_waitcnt vmcnt(0)
        v_cmp_ne_u32 vcc, s{sTAG}, v{T+8}
        s_cbranch_vccz L_hsd
        s_add_u32 s{sCNT}, s{sCNT}, 1
        s_cmp_lt_u32 s{sCNT}, s{sLIM}
        s_cbranch_scc1 L_hs
        s_mov_b32 s{sLIM}, 0
        L_hsd:
        s_setprio {P_CRIT}
        v_cmp_ne_u32 vcc, s{sXCC}, v{T+9}
        s_and_b32 s{sT0}, vcc_lo, 0xff
        s_cmp_eq_u32 s{sT0}, 0
        s_cselect_b32 s{sT0}, 1, 0
        v_mov_b32 v{T}, s{sT0}
        v_mov_b32 v{T+1}, {MODE}
        ds_write_b32 v{T+1}, v{T}
        """)
        self.flag_add(0)
        self.stamp(1)
        a.c("---- L0 q gather, all 4 heads")
        loads = []
        for u in range(4):
            for e in range(4):
                loads.append(f"s_mov_b32 s{sOFF}, {LB(0)+QB+u*4096}") if e == 0 else None
                loads.append(f"buffer_load_dwordx4 {vr(T+16*u+4*e,4)}, v{aG}, {WSR}, s{sOFF} offen offset:{e*1024} sc1")
        self.poll(loads, list(range(T, T+64)), t0)
        for u in range(4):
            self.sum4(T + 16*u)
            a(f"v_cvt_pk_bf16_f32 v{T+16*u}, v{T+16*u}, v{T+16*u+1}")
            a(f"ds_write_b32 v{aPw}, v{T+16*u} offset:{u*256}")
        self.flag_add(4)
        self.stamp(3)
        a("s_branch L_bload")
        a.label("L_b123")
        a("s_waitcnt vmcnt(0)")
        self.flag_add(0)
        a.label("L_bload")
        self.lanes()
        self.addr_wq(S1)
        self.addr_kv(S1+1, S1+2)
        a(f"s_setprio {P_LB}")
        self.issue_wq(S1)
        self.issue_kv(S1+1, S1+2)
        a(f"s_setprio {P_CRIT}")
        self.stamp(4)

    def B_L1(self):
        a = self.a
        l = 1
        a.c("======== layer 1 compute role (first use of B)")
        self.perm(Z(1), Z(0), 24)
        self.perm(Z(2), Z(1), 16)
        T = Z(2)
        self.cs_pass(1, T)
        self.stamp(5)
        self.addr_wo(t2, t3)
        a(f"s_mov_b32 s{sOFF}, {LB(l)+QB}")
        a("s_barrier")
        self.stamp(1 + 8*l)
        self.read_mode()
        self.qproj(l, T, 0)
        self.stamp(2 + 8*l)
        a(f"s_setprio {P_LB}")
        self.issue_wo(t2)
        a(f"s_setprio {P_CRIT}")
        a("s_waitcnt vmcnt(26)")
        self.stamp(16)
        self.kfrags()
        self.perm(Z(3), Z(2), 18)
        self.stamp(24)
        T = Z(3)
        self.ones(T)
        a("s_waitcnt lgkmcnt(0)")
        a("s_barrier")
        self.stamp(3 + 8*l)
        self.attention(T)
        a("s_waitcnt lgkmcnt(0)")
        a("s_barrier")
        self.stamp(4 + 8*l)
        self.perm(Z(4), Z(3), 8)
        self.perm(Z(5), Z(4), 0)
        self.stamp(32)
        T = Z(5)
        self.ogather_oproj(l, T)
        a("s_waitcnt lgkmcnt(0)")
        a("s_barrier")
        self.stamp(6 + 8*l)

    def final(self):
        a = self.a
        a.c("======== final")
        a(f"s_cmp_lg_u32 s{sWV}, 0")
        a("s_cbranch_scc1 L_fin")
        a(f"s_cmp_lg_u32 s{sG}, 0")
        a("s_cbranch_scc1 L_fin")
        self.xgather(3)
        a(f"""
        s_lshl_b32 s{sT0}, s{sB}, 10
        s_lshl_b32 s{sT1}, s{sS}, 7
        s_add_u32 s{sT0}, s{sT0}, s{sT1}
        s_sub_u32 s{sT0}, s{sT0}, {XL}
        v_add_u32 v{S1+8}, s{sT0}, v{aXl}
        global_store_short v{S1+8}, v{S1+9}, s[{sOUTP}:{sOUTP+1}]
        s_cmp_lg_u32 s{sS}, 0
        s_cbranch_scc1 L_fin
        s_lshl_b32 s{sT0}, s{sB}, 8
        v_mov_b32 v{S1}, s{sT0}
        v_mov_b32 v{S1+1}, s{sTAG}
        s_mov_b64 exec, 1
        buffer_store_dword v{S1+1}, v{S1}, {WSR}, 0 offen sc1
        s_mov_b64 exec, -1
        """)

    def prof_out(self):
        if not self.cfg.PROF: return
        a = self.a
        self.stamp(33)
        a(f"""
        s_lshl_b32 s{sT0}, s2, 3
        s_lshl_b32 s{sT1}, s{sTY}, 2
        s_add_u32 s{sT0}, s{sT0}, s{sT1}
        s_add_u32 s{sT0}, s{sT0}, s{sWV}
        s_lshl_b32 s{sT0}, s{sT0}, 8
        s_add_u32 s{sT0}, s{sT0}, {PROFB}
        v_mov_b32 v{t0}, 0
        """)
        for i in range(34):
            a(f"v_writelane_b32 v{t0}, s{sPROF+i}, {i}")
        a(f"s_memrealtime s[98:99]")
        a("s_waitcnt lgkmcnt(0)")
        a(f"v_writelane_b32 v{t0}, s98, 34")
        a(f"v_writelane_b32 v{t0}, s{sXCC}, 35")
        a(f"v_writelane_b32 v{t0}, s{sMODE}, 36")
        a(f"v_lshlrev_b32 v{t1}, 2, v0")
        a(f"v_add_u32 v{t1}, s{sT0}, v{t1}")
        a(f"buffer_store_dword v{t0}, v{t1}, {WSR}, 0 offen")

    def build(self):
        a = self.a
        if self.cfg.PROF:
            for i in range(34): a(f"s_mov_b32 s{sPROF+i}, 0")
        self.prologue()
        self.lanes()
        self.addr_wq(S1)
        self.addr_kv(S1+1, S1+2)
        self.addr_wo(S1+3, t2)
        self.srds()
        a(f"s_cmp_eq_u32 s{sTY}, 1")
        a("s_cbranch_scc1 L_B")
        self.A_start_L0()
        self.M_layer(1, True, 1)
        self.C_layer(2)
        self.M_layer(3, False, 0)
        a("s_branch L_fin")
        a.label("L_B")
        self.B_start()
        self.B_L1()
        self.M_layer(2, True, 0)
        self.C_layer(3)
        self.final()
        a.label("L_fin")
        self.prof_out()
        a.label("L_end")
        a("s_endpgm")
        lines = hazard.run(a.lines)
        return "\n".join(lines) + "\n"

def header():
    ref = open(f"cdna_kernels/{NAME}.s.ref").read().split("\n")
    out = []
    for l in ref:
        if l.startswith("; @launch"): break
        out.append(l)
    out.append(f"; @launch grid=(256,1,1) block=(512,1,1) lds={LDS_SIZE}")
    return "\n".join(out)

def generate(cfg):
    g = Gen(cfg)
    body = g.build()
    return kernel_wrap(NAME + "_kernel", body, 256, 102, 256, 104, header())

if __name__ == "__main__":
    ap = argparse.ArgumentParser()
    ap.add_argument("-o", default=f"cdna_kernels/{NAME}.s")
    ap.add_argument("--set", action="append", default=[])
    args = ap.parse_args()
    cfg = Cfg()
    for s in args.set:
        k, v = s.split("=", 1)
        setattr(cfg, k, eval(v))
    open(args.o, "w").write(generate(cfg))
    print("wrote", args.o)
```

```python
import sys, struct, argparse
sys.path.insert(0, 'gen')
from asmlib import *
import hazard

NAME = "interleave_layers__sliding_block_cached__sliding_block_cached__decode"
def f2u(x): return struct.unpack("<I", struct.pack("<f", x))[0]

class Cfg:
    FAST = True
    ROUND_S = True
    PROF = False
    LOADMOD = " nt"
    PREFETCH = True
    SPIN = 1 << 15

KL = 0
XL = 0x10000
QL = 0x10100
OL = 0x10500
ML = 0x10900
MODE = 0x10980
FLG = 0x10990
RED = 0x10A00
ORED = 0x11200
TRASH = 0x13200
LDS_SIZE = 0x13600
EPOCH = 0
HS = 0x1000
PROFB = 0x40000
LS = 0x200000
def LB(l): return LS * (l + 1)
QB, OB, CSB, AUXQ, AUXO, XB = 0, 0x80000, 0x100000, 0x180000, 0x190000, 0x1A0000
WS_SIZE = 268435456
sG, sB, sS, sWV, sTY, sGI, sMODE, sLIM = 4, 5, 6, 7, 8, 9, 10, 11
SWS = 12
SWQ, SK, SV, SWO = 16, 20, 24, 28
sPTR = 32
sWSP, sOUTP, sXP = 40, 42, 44
sSELLO, sSELHI = 46, 47
sMODD, sMHI = 48, 50
sOFF, sCNT, sTAG, sT0, sT1, sOFF2 = 52, 53, 54, 55, 56, 57
sM2 = 58
sSCALE, sLOG2E = 60, 61
sXCC = 62
sPROF = 64
(aXf, aQst, aKf, aQf, aOW, aMw, aLw, aG, aAo, aAq, aPw, aOf, aRw,
 aXg, aXl, aORr, aMLr, aOst, aAost, aRr, aXst, cs0, cs1) = range(1, 24)
t0, t1, t2, t3, t4, t5, t6, t7 = range(24, 32)
DUM = 28
S1 = 32
def Z(i): return 64 + 32 * i
WQ0, WQ1, VF, WO0, WO1 = Z(0), Z(1), Z(2), Z(3), Z(4)
DPPF = "row_mask:0xf bank_mask:0xf"
WSR = f"s[{SWS}:{SWS+3}]"
P_CRIT, P_POLL, P_LA, P_LB = 3, 2, 1, 0

class Gen:
    def __init__(self, cfg):
        self.a = Asm(); self.cfg = cfg

    def stamp(self, idx):
        if not self.cfg.PROF: return
        a = self.a
        a("s_memtime s[98:99]")
        a("s_waitcnt lgkmcnt(0)")
        a(f"s_mov_b32 s{sPROF+idx}, s98")

    def store(self, instr, scope):
        a = self.a
        if scope == 'dev' or not self.cfg.FAST:
            a(instr + " sc1"); return
        l1 = a.newlabel("Lst"); l2 = a.newlabel("Lst")
        a(f"s_cmp_eq_u32 s{sMODE}, 0")
        a(f"s_cbranch_scc1 {l1}")
        a(instr)
        a(f"s_branch {l2}")
        a.label(l1)
        a(instr + " sc1")
        a.label(l2)

    def poll(self, loads, regs, tmp):
        a = self.a
        L = a.newlabel("Lp"); D = a.newlabel("Lpd")
        a(f"s_mov_b32 s{sCNT}, 0")
        a(f"s_setprio {P_POLL}")
        a.label(L)
        for x in loads: a(x)
        a("s_waitcnt vmcnt(0)")
        rs = list(regs)
        if len(rs) == 2:
            a(f"v_max_u32 v{tmp}, v{rs[0]}, v{rs[1]}")
        else:
            a(f"v_max3_u32 v{tmp}, v{rs[0]}, v{rs[1]}, v{rs[2]}")
            rs = rs[3:]
            while len(rs) >= 2:
                a(f"v_max3_u32 v{tmp}, v{tmp}, v{rs[0]}, v{rs[1]}"); rs = rs[2:]
            if rs: a(f"v_max_u32 v{tmp}, v{tmp}, v{rs[0]}")
        a(f"v_cmp_eq_u32 vcc, -1, v{tmp}")
        a(f"s_cbranch_vccz {D}")
        a(f"s_add_u32 s{sCNT}, s{sCNT}, 1")
        a(f"s_cmp_lt_u32 s{sCNT}, s{sLIM}")
        a(f"s_cbranch_scc1 {L}")
        a(f"s_mov_b32 s{sLIM}, 0")
        a.label(D)
        a(f"s_setprio {P_CRIT}")

    def bulk(self, T, soff):
        return [f"buffer_load_dwordx4 {vr(T+4*e,4)}, v{aG}, {WSR}, s{soff} offen offset:{e*1024} sc1" for e in range(4)]

    def flag_add(self, off):
        a = self.a
        a(f"v_mov_b32 v{t0}, {FLG+off}")
        a(f"v_mov_b32 v{t1}, 1")
        a("s_mov_b64 exec, 1")
        a(f"ds_add_u32 v{t0}, v{t1}")
        a("s_mov_b64 exec, -1")
    def flag_wait(self, off, target):
        a = self.a
        L = a.newlabel("Lf"); D = a.newlabel("Lfd")
        a(f"v_mov_b32 v{t0}, {FLG+off}")
        a(f"s_mov_b32 s{sCNT}, 0")
        a.label(L)
        a(f"ds_read_b32 v{t1}, v{t0}")
        a("s_waitcnt lgkmcnt(0)")
        a(f"v_readfirstlane_b32 s{sT0}, v{t1}")
        a(f"s_cmp_ge_u32 s{sT0}, {target}")
        a(f"s_cbranch_scc1 {D}")
        a(f"s_add_u32 s{sCNT}, s{sCNT}, 1")
        a(f"s_cmp_lt_u32 s{sCNT}, 0x200000")
        a(f"s_cbranch_scc1 {L}")
        a.label(D)

    def bf16r(self, v, tmp):
        self.a(f"v_cvt_pk_bf16_f32 v{tmp}, v{v}, v{v}")
        self.a(f"v_lshlrev_b32 v{v}, 16, v{tmp}")
    def red8(self, op, v):
        a = self.a
        a(f"{op}_dpp v{v}, v{v}, v{v} quad_perm:[1,0,3,2] {DPPF}")
        a(f"{op}_dpp v{v}, v{v}, v{v} quad_perm:[2,3,0,1] {DPPF}")
        a(f"{op}_dpp v{v}, v{v}, v{v} row_half_mirror {DPPF}")
    def redrows(self, op, v, tmp):
        a = self.a
        a(f"v_mov_b32 v{tmp}, v{v}")
        a(f"v_permlane16_swap_b32 v{v}, v{tmp}")
        a(f"{op} v{v}, v{v}, v{tmp}")
        a(f"v_mov_b32 v{tmp}, v{v}")
        a(f"v_permlane32_swap_b32 v{v}, v{tmp}")
        a(f"{op} v{v}, v{v}, v{tmp}")
    def red64(self, op, v, tmp):
        self.red8(op, v)
        self.a(f"{op}_dpp v{v}, v{v}, v{v} row_mirror {DPPF}")
        self.redrows(op, v, tmp)
    def halves(self, acc):
        a = self.a
        a(f"v_permlane32_swap_b32 v{acc}, v{acc+2}")
        a(f"v_permlane32_swap_b32 v{acc+1}, v{acc+3}")
        a(f"v_add_f32 v{acc}, v{acc}, v{acc+2}")
        a(f"v_add_f32 v{acc+1}, v{acc+1}, v{acc+3}")
    def sum4(self, T):
        a = self.a
        for k in range(4): a(f"v_add_f32 v{T+k}, v{T+k}, v{T+4+k}")
        for k in range(4): a(f"v_add_f32 v{T+8+k}, v{T+8+k}, v{T+12+k}")
        for k in range(4): a(f"v_add_f32 v{T+k}, v{T+k}, v{T+8+k}")
        self.halves(T)
    def ln_den(self, mean, d, tmp):
        a = self.a
        self.bf16r(mean, tmp)
        self.bf16r(d, tmp)
        a(f"v_add_f32 v{d}, {hex(f2u(1e-5))}, v{d}")
        self.bf16r(d, tmp)
        a(f"v_sqrt_f32 v{d}, v{d}")
        self.bf16r(d, tmp)
        a(f"v_rcp_f32 v{d}, v{d}")

    def prologue(self):
        a = self.a
        a(f"""
        s_cmp_ge_u32 s2, 256
        s_cbranch_scc1 L_end
        v_lshrrev_b32 v{t0}, 6, v0
        s_load_dwordx2 s[{sWSP}:{sWSP+1}], s[0:1], 96
        v_readfirstlane_b32 s3, v{t0}
        s_load_dwordx2 s[{sXP}:{sXP+1}], s[0:1], 0
        s_load_dwordx2 s[{sOUTP}:{sOUTP+1}], s[0:1], 80
        s_lshr_b32 s{sTY}, s3, 2
        s_and_b32 s{sWV}, s3, 3
        s_mul_i32 s3, s{sTY}, 40
        s_add_u32 s3, s3, 8
        s_load_dwordx8 s[{sPTR}:{sPTR+7}], s[0:1], s3
        """)
        self.stamp(0)
        a(f"""
        v_and_b32 v0, 63, v0
        s_and_b32 s{sG}, s2, 7
        s_lshr_b32 s3, s2, 3
        s_and_b32 s{sS}, s3, 7
        s_lshr_b32 s{sB}, s3, 3
        s_lshl_b32 s{sGI}, s{sB}, 3
        s_add_u32 s{sGI}, s{sGI}, s{sG}
        s_mov_b32 s{sMODE}, 0
        s_mov_b32 s{sLIM}, {self.cfg.SPIN}
        s_mov_b32 s{sSELLO}, 0x05040100
        s_mov_b32 s{sSELHI}, 0x07060302
        s_mov_b32 s{sMODD}, 0xffff0000
        s_mov_b32 s{sMODD+1}, 0xffff0000
        s_mov_b32 s{sMHI}, 0
        s_mov_b32 s{sMHI+1}, -1
        s_mov_b32 s{sM2}, 0x11111111
        s_mov_b32 s{sM2+1}, 0x11111111
        s_mov_b32 s{sSCALE}, {hex(f2u(128 ** -0.5))}
        s_mov_b32 s{sLOG2E}, {hex(f2u(1.4426950408889634))}
        s_getreg_b32 s{sXCC}, hwreg(HW_REG_XCC_ID)
        """)

    def lanes(self):
        self.a(f"v_and_b32 v{t0}, 15, v0          ; lo4")
        self.a(f"v_lshrrev_b32 v{t1}, 4, v0       ; t")

    def addr_wq(self, r):
        self.a(f"""
        s_lshl_b32 s3, s{sS}, 19
        s_lshl_b32 s{sT0}, s{sG}, 10
        s_add_u32 s3, s3, s{sT0}
        s_lshl_b32 s{sT0}, s{sWV}, 8
        s_add_u32 s3, s3, s{sT0}
        v_lshlrev_b32 v{r}, 16, v{t1}
        v_lshl_add_u32 v{r}, v{t0}, 4, v{r}
        v_add_u32 v{r}, s3, v{r}
        """)
    def addr_kv(self, rk, rv):
        self.a(f"""
        s_lshl_b32 s3, s{sGI}, 12
        s_add_u32 s3, s3, 3072
        s_lshl_b32 s{sT0}, s{sS}, 7
        s_add_u32 s3, s3, s{sT0}
        s_lshl_b32 s{sT0}, s{sWV}, 5
        s_add_u32 s3, s3, s{sT0}
        s_lshl_b32 s3, s3, 8
        v_lshlrev_b32 v{rk}, 8, v{t0}
        v_lshl_add_u32 v{rk}, v{t1}, 4, v{rk}
        v_add_u32 v{rk}, s3, v{rk}
        v_lshlrev_b32 v{rv}, 10, v{t1}
        v_lshl_add_u32 v{rv}, v{t0}, 4, v{rv}
        v_add_u32 v{rv}, s3, v{rv}
        """)
    def addr_wo(self, r, tmp):
        self.a(f"""
        s_lshl_b32 s3, s{sG}, 19
        s_lshl_b32 s{sT0}, s{sWV}, 17
        s_add_u32 s3, s3, s{sT0}
        s_lshl_b32 s{sT0}, s{sS}, 7
        s_add_u32 s3, s3, s{sT0}
        v_lshrrev_b32 v{r}, 3, v0
        v_lshlrev_b32 v{r}, 13, v{r}
        v_and_b32 v{tmp}, 7, v0
        v_lshl_add_u32 v{r}, v{tmp}, 4, v{r}
        v_add_u32 v{r}, s3, v{r}
        """)

    def srds(self):
        a = self.a
        a("s_waitcnt lgkmcnt(0)")
        for srd, p, size in ((SWQ, sPTR+4, 4194304), (SWS, sWSP, WS_SIZE), (SK, sPTR, 33554432), (SV, sPTR+2, 33554432), (SWO, sPTR+6, 4194304)):
            a(f"s_mov_b32 s{srd}, s{p}")
            a(f"s_and_b32 s{srd+1}, s{p+1}, 0xffff")
            a(f"s_mov_b32 s{srd+2}, {size}")
            a(f"s_mov_b32 s{srd+3}, 0x20000")

    def issue_wq(self, r):
        a = self.a; lm = self.cfg.LOADMOD
        for blk in range(2):
            for e in range(8):
                a(f"s_mov_b32 s{sOFF}, {(32*blk+e)*8192}")
                a(f"buffer_load_dwordx4 {vr(Z(1+blk)+4*e,4)}, v{r}, s[{SWQ}:{SWQ+3}], s{sOFF} offen{lm}")
    def issue_kv(self, rk, rv):
        a = self.a; lm = self.cfg.LOADMOD
        a(f"s_lshl_b32 s3, s{sTY}, 15")
        a(f"s_lshl_b32 s{sT0}, s{sWV}, 13")
        a(f"s_add_u32 s3, s3, s{sT0}")
        for tile in range(2):
            for step in range(4):
                idx = tile*4+step
                a(f"s_add_u32 m0, s3, {idx*1024}")
                a(f"s_mov_b32 s{sOFF}, {tile*4096+step*64}")
                a(f"buffer_load_dwordx4 v{rk}, s[{SK}:{SK+3}], s{sOFF} offen{lm} lds")
        for e in range(8):
            row = e if e < 4 else 16 + e - 4
            a(f"s_mov_b32 s{sOFF}, {row*256}")
            a(f"buffer_load_dwordx4 {vr(Z(3)+4*e,4)}, v{rv}, s[{SV}:{SV+3}], s{sOFF} offen{lm}")
    def issue_wo(self, r):
        a = self.a; lm = self.cfg.LOADMOD
        for blk in range(2):
            for e in range(8):
                a(f"s_mov_b32 s{sOFF}, {(64*blk+e)*1024}")
                a(f"buffer_load_dwordx4 {vr(Z(4+blk)+4*e,4)}, v{r}, s[{SWO}:{SWO+3}], s{sOFF} offen{lm}")

    def addrs(self):
        a = self.a
        a(f"""
        v_lshrrev_b32 v{t2}, 5, v0          ; half
        v_and_b32 v{t3}, 31, v0             ; gi32
        v_lshrrev_b32 v{t4}, 3, v{t0}       ; lo4>>3
        v_lshlrev_b32 v{aXf}, 4, v{t1}
        v_add_u32 v{aXf}, {XL}, v{aXf}
        s_lshl_b32 s{sT0}, s{sGI}, 14
        s_lshl_b32 s{sT1}, s{sWV}, 12
        s_add_u32 s{sT0}, s{sT0}, s{sT1}
        s_lshl_b32 s{sT1}, s{sS}, 9
        s_add_u32 s{sT1}, s{sT1}, s{sT0}    ; + s*512
        v_and_b32 v{t5}, 1, v{t1}           ; t&1
        v_lshlrev_b32 v{aQst}, 5, v{t0}
        v_lshl_add_u32 v{aQst}, v{t5}, 4, v{aQst}
        v_add_u32 v{aQst}, s{sT1}, v{aQst}
        v_lshlrev_b32 v{aOst}, 5, v{t0}
        v_lshl_add_u32 v{aOst}, v{t1}, 3, v{aOst}
        v_add_u32 v{aOst}, s{sT1}, v{aOst}
        v_lshlrev_b32 v{aG}, 9, v{t2}
        v_lshl_add_u32 v{aG}, v{t3}, 4, v{aG}
        v_add_u32 v{aG}, s{sT0}, v{aG}
        s_lshl_b32 s{sT0}, s{sTY}, 15
        s_lshl_b32 s{sT1}, s{sWV}, 13
        s_add_u32 s{sT0}, s{sT0}, s{sT1}
        v_lshlrev_b32 v{aKf}, 4, v0
        v_add_u32 v{aKf}, s{sT0}, v{aKf}
        v_lshrrev_b32 v{t6}, 2, v{t0}       ; lo4>>2
        v_lshlrev_b32 v{aQf}, 8, v{t6}
        v_lshl_add_u32 v{aQf}, v{t1}, 4, v{aQf}
        v_add_u32 v{aQf}, {QL}, v{aQf}
        s_lshl_b32 s{sT0}, s{sWV}, 11
        s_add_u32 s{sT0}, s{sT0}, {ORED}
        v_lshlrev_b32 v{aOW}, 2, v0
        v_add_u32 v{aOW}, s{sT0}, v{aOW}
        s_lshl_b32 s{sT0}, s{sWV}, 2
        s_add_u32 s{sT0}, s{sT0}, {ML}
        v_lshlrev_b32 v{aMw}, 4, v{t6}
        v_add_u32 v{aMw}, s{sT0}, v{aMw}
        v_lshlrev_b32 v{aLw}, 4, v{t1}
        v_add_u32 v{aLw}, s{sT0}, v{aLw}
        v_add_u32 v{aLw}, 64, v{aLw}
        s_lshl_b32 s{sT0}, s{sGI}, 2
        s_add_u32 s{sT0}, s{sT0}, s{sWV}
        s_lshl_b32 s{sT0}, s{sT0}, 7
        s_add_u32 s{sT0}, s{sT0}, {AUXO}
        v_add_u32 v{aAo}, v0, v{t2}
        v_and_b32 v{aAo}, 7, v{aAo}
        v_lshlrev_b32 v{aAo}, 3, v{aAo}
        v_add_u32 v{aAo}, s{sT0}, v{aAo}
        s_lshl_b32 s{sT1}, s{sS}, 3
        s_add_u32 s{sT0}, s{sT0}, s{sT1}
        v_mov_b32 v{aAost}, s{sT0}
        s_lshl_b32 s{sT0}, s{sGI}, 7
        s_add_u32 s{sT0}, s{sT0}, {AUXQ}
        v_and_b32 v{aAq}, 7, v0
        v_lshlrev_b32 v{aAq}, 3, v{aAq}
        v_add_u32 v{aAq}, s{sT0}, v{aAq}
        s_lshl_b32 s{sT0}, s{sWV}, 8
        v_lshlrev_b32 v{aPw}, 3, v{t3}
        v_lshl_add_u32 v{aPw}, v{t2}, 2, v{aPw}
        v_add_u32 v{aPw}, s{sT0}, v{aPw}
        v_add_u32 v{aPw}, {QL}, v{aPw}
        v_and_b32 v{t7}, 1, v{t6}
        v_lshl_add_u32 v{aOf}, v{t1}, 1, v{t7}
        v_lshlrev_b32 v{aOf}, 4, v{aOf}
        v_add_u32 v{aOf}, s{sT0}, v{aOf}
        v_add_u32 v{aOf}, {OL}, v{aOf}
        s_lshl_b32 s{sT0}, s{sWV}, 9
        s_add_u32 s{sT0}, s{sT0}, {RED}
        v_lshlrev_b32 v{aRw}, 8, v{t4}
        v_and_b32 v{t7}, 7, v0
        v_lshl_add_u32 v{aRw}, v{t7}, 5, v{aRw}
        v_lshl_add_u32 v{aRw}, v{t2}, 4, v{aRw}
        v_add_u32 v{aRw}, s{sT0}, v{aRw}
        v_lshlrev_b32 v{t7}, 4, v0
        v_add_u32 v{t7}, {TRASH}, v{t7}
        v_cmp_eq_u32 vcc, v{t5}, v{t4}
        v_cndmask_b32 v{aRw}, v{t7}, v{aRw}, vcc
        s_lshl_b32 s{sT0}, s{sB}, 3
        s_add_u32 s{sT0}, s{sT0}, s{sS}
        s_lshl_b32 s{sT0}, s{sT0}, 11
        s_add_u32 s{sT0}, s{sT0}, {XB}
        v_lshlrev_b32 v{aXg}, 4, v0
        v_add_u32 v{aXg}, s{sT0}, v{aXg}
        s_lshl_b32 s{sT1}, s{sG}, 8
        s_add_u32 s{sT0}, s{sT0}, s{sT1}
        v_lshrrev_b32 v{t7}, 2, v0
        v_lshlrev_b32 v{aXst}, 4, v{t7}
        v_add_u32 v{aXst}, s{sT0}, v{aXst}
        v_and_b32 v{aRr}, 3, v0
        v_lshlrev_b32 v{aRr}, 9, v{aRr}
        v_lshl_add_u32 v{aRr}, v{t7}, 4, v{aRr}
        v_add_u32 v{aRr}, {RED}, v{aRr}
        v_lshl_add_u32 v{aXl}, v{t0}, 2, v{t1}
        v_lshlrev_b32 v{aXl}, 1, v{aXl}
        v_add_u32 v{aXl}, {XL}, v{aXl}
        s_lshl_b32 s{sT0}, s{sWV}, 6
        s_add_u32 s{sT0}, s{sT0}, {ORED}
        v_lshlrev_b32 v{aORr}, 9, v{t1}
        v_lshl_add_u32 v{aORr}, v{t0}, 2, v{aORr}
        v_add_u32 v{aORr}, s{sT0}, v{aORr}
        s_lshl_b32 s{sT0}, s{sWV}, 4
        s_add_u32 s{sT0}, s{sT0}, {ML}
        v_mov_b32 v{aMLr}, s{sT0}
        """)

    def perm(self, zs, zd, vm_after):
        a = self.a
        for p in range(4):
            a(f"s_waitcnt vmcnt({vm_after + 6 - 2*p})")
            for w in range(4):
                lo = zs + 8*p + w; hi = zs + 8*p + 4 + w
                a(f"v_perm_b32 v{zd+8*w+p}, v{hi}, v{lo}, s{sSELLO}")
                a(f"v_perm_b32 v{zd+8*w+4+p}, v{hi}, v{lo}, s{sSELHI}")

    def read_mode(self):
        a = self.a
        if not self.cfg.FAST: return
        a(f"v_mov_b32 v{t0}, {MODE}")
        a(f"ds_read_b32 v{t0}, v{t0}")
        a("s_waitcnt lgkmcnt(0)")
        a(f"v_readfirstlane_b32 s{sMODE}, v{t0}")

    def gemv(self, addr, off0, off1, W0, W1, T):
        a = self.a
        a(f"ds_read_b128 {vr(T,4)}, v{addr} offset:{off0}")
        a(f"ds_read_b128 {vr(T+4,4)}, v{addr} offset:{off1}")
        a("s_waitcnt lgkmcnt(1)")
        for j in range(8):
            a(f"v_mfma_f32_16x16x32_bf16 {vr(S1+4*j,4)}, {vr(T,4)}, {vr(W0+4*j,4)}, 0")
        a("s_waitcnt lgkmcnt(0)")
        for j in (0, 4, 1, 5, 2, 6, 3, 7):
            a(f"v_mfma_f32_16x16x32_bf16 {vr(S1+4*j,4)}, {vr(T+4,4)}, {vr(W1+4*j,4)}, {vr(S1+4*j,4)}")

    def qproj(self, l, T, xoff):
        a = self.a
        self.gemv(aXf, xoff, xoff + 64, WQ0, WQ1, T)
        for k in range(4):
            a(f"v_cndmask_b32 v{T+8+k}, v{S1+4*k}, v{S1+16+4*k}, s[{sMODD}:{sMODD+1}]")
        a("s_mov_b32 exec_hi, 0")
        self.store(f"buffer_store_dwordx4 {vr(T+8,4)}, v{aQst}, {WSR}, s{sOFF} offen", 'grp')
        a("s_mov_b32 exec_hi, -1")

    def cs_pass(self, ty, T):
        a = self.a
        for k in range(4): a(f"v_mov_b32 v{T+k}, 0x3f803f80")
        for j in range(8):
            a(f"v_mfma_f32_16x16x32_bf16 {vr(S1+4*j,4)}, {vr(T,4)}, {vr(WQ0+4*j,4)}, 0")
        for j in (0, 4, 1, 5, 2, 6, 3, 7):
            a(f"v_mfma_f32_16x16x32_bf16 {vr(S1+4*j,4)}, {vr(T,4)}, {vr(WQ1+4*j,4)}, {vr(S1+4*j,4)}")
        a(f"s_mov_b32 s{sOFF2}, {LB(ty)+CSB}")
        for k in range(4):
            a(f"v_cndmask_b32 v{T+12+k}, v{S1+4*k}, v{S1+16+4*k}, s[{sMODD}:{sMODD+1}]")
        a("s_mov_b32 exec_hi, 0")
        self.store(f"buffer_store_dwordx4 {vr(T+12,4)}, v{aQst}, {WSR}, s{sOFF2} offen", 'dev')
        a("s_mov_b32 exec_hi, -1")

    def kfrags(self):
        for i in range(8):
            self.a(f"ds_read_b128 {vr(S1+4*i,4)}, v{aKf} offset:{i*1024}")

    def attention(self, T):
        a = self.a; cfg = self.cfg
        for st in range(4):
            a(f"ds_read_b128 {vr(T+4*st,4)}, v{aQf} offset:{st*64}")
        for st in range(4):
            a(f"s_waitcnt lgkmcnt({3-st})")
            for tile in range(2):
                acc = T + 16 + 4*tile
                c = "0" if st == 0 else vr(acc, 4)
                a(f"v_mfma_f32_16x16x32_bf16 {vr(acc,4)}, {vr(S1+16*tile+4*st,4)}, {vr(T+4*st,4)}, {c}")
        sc = [T + 16 + i for i in range(8)]
        if cfg.ROUND_S:
            for i in range(4):
                a(f"v_cvt_pk_bf16_f32 v{T+i}, v{sc[2*i]}, v{sc[2*i+1]}")
            for i in range(4):
                a(f"v_lshlrev_b32 v{sc[2*i]}, 16, v{T+i}")
                a(f"v_and_b32 v{sc[2*i+1]}, 0xffff0000, v{T+i}")
            for i in range(8):
                a(f"v_mul_f32 v{sc[i]}, s{sSCALE}, v{sc[i]}")
            for i in range(4):
                a(f"v_cvt_pk_bf16_f32 v{T+i}, v{sc[2*i]}, v{sc[2*i+1]}")
            for i in range(4):
                a(f"v_lshlrev_b32 v{sc[2*i]}, 16, v{T+i}")
                a(f"v_and_b32 v{sc[2*i+1]}, 0xffff0000, v{T+i}")
            a(f"s_mov_b32 s{sT0}, s{sLOG2E}")
        else:
            a(f"s_mov_b32 s{sT0}, {hex(f2u(128 ** -0.5 * 1.4426950408889634))}")
        m = T + 4; tmp = T + 5
        a(f"v_max3_f32 v{m}, v{sc[0]}, v{sc[1]}, v{sc[2]}")
        a(f"v_max3_f32 v{tmp}, v{sc[3]}, v{sc[4]}, v{sc[5]}")
        a(f"v_max3_f32 v{m}, v{m}, v{sc[6]}, v{sc[7]}")
        a(f"v_max_f32 v{m}, v{m}, v{tmp}")
        self.redrows("v_max_f32", m, tmp)
        a(f"v_mul_f32 v{m}, s{sT0}, v{m}")
        for i in range(8):
            a(f"v_fma_f32 v{sc[i]}, v{sc[i]}, s{sT0}, -v{m}")
        a(f"ds_write_b32 v{aMw}, v{m}")
        for i in range(8):
            a(f"v_exp_f32 v{sc[i]}, v{sc[i]}")
        for i in range(4):
            a(f"v_cvt_pk_bf16_f32 v{T+24+i}, v{sc[2*i]}, v{sc[2*i+1]}")
        a(f"v_mfma_f32_16x16x32_bf16 {vr(T+8,4)}, {vr(T+24,4)}, {vr(T+28,4)}, 0")
        for j in range(8):
            a(f"v_mfma_f32_16x16x32_bf16 {vr(S1+4*j,4)}, {vr(T+24,4)}, {vr(VF+4*j,4)}, 0")
        a(f"ds_write_b32 v{aLw}, v{T+8}")
        for jp in range(4):
            a(f"ds_write2st64_b32 v{aOW}, v{S1+8*jp}, v{S1+8*jp+4} offset0:{2*jp} offset1:{2*jp+1}")

    def ones(self, T):
        for k in range(4): self.a(f"v_mov_b32 v{T+28+k}, 0x3f803f80")

    def ogather_oproj(self, l, T):
        a = self.a
        a(f"s_mov_b32 s{sOFF}, {LB(l)}")
        a(f"s_mov_b32 s{sOFF2}, {LB(l)+OB}")
        ml = T + 16
        self.poll([f"buffer_load_dwordx2 {vr(ml,2)}, v{aAo}, {WSR}, s{sOFF} offen sc1"], [ml, ml+1], t0)
        self.poll(self.bulk(T, sOFF2), list(range(T, T+16)), t0)
        self.stamp(5 + 8*l)
        mx = T + 18; w = T + 19; ls = T + 20
        a(f"v_mov_b32 v{mx}, v{ml}")
        self.red8("v_max_f32", mx)
        a(f"v_sub_f32 v{w}, v{ml}, v{mx}")
        a(f"v_exp_f32 v{w}, v{w}")
        a(f"v_mul_f32 v{ls}, v{w}, v{ml+1}")
        self.red8("v_add_f32", ls)
        a(f"v_rcp_f32 v{ls}, v{ls}")
        a(f"v_mul_f32 v{w}, v{w}, v{ls}")
        acc = T + 24
        for e in range(4):
            for k in range(4):
                op = "v_mul_f32_dpp" if e == 0 else "v_fmac_f32_dpp"
                a(f"{op} v{acc+k}, v{w}, v{T+4*e+k} row_newbcast:{2*e} {DPPF}")
        self.halves(acc)
        a(f"v_cvt_pk_bf16_f32 v{acc}, v{acc}, v{acc+1}")
        a(f"ds_write_b32 v{aPw}, v{acc} offset:{OL-QL}")
        a("s_waitcnt lgkmcnt(0)")
        self.gemv(aOf, 0, 128, WO0, WO1, T)
        for k in range(4):
            a(f"v_cndmask_b32 v{T+8+k}, v{S1+4*k}, v{S1+16+4*k}, s[{sMHI}:{sMHI+1}]")
        a(f"ds_write_b128 v{aRw}, {vr(T+8,4)}")

    def combine(self, l, T):
        a = self.a
        a(f"ds_read_b128 {vr(T+8,4)}, v{aMLr}")
        a(f"ds_read_b128 {vr(T+12,4)}, v{aMLr} offset:64")
        for v in range(4):
            a(f"ds_read2st64_b32 {vr(T+2*v,2)}, v{aORr} offset0:{8*v} offset1:{8*v+1}")
        M = T + 16
        a("s_waitcnt lgkmcnt(5)")
        a(f"v_max3_f32 v{M}, v{T+8}, v{T+9}, v{T+10}")
        a(f"v_max_f32 v{M}, v{M}, v{T+11}")
        for v in range(4): a(f"v_sub_f32 v{T+8+v}, v{T+8+v}, v{M}")
        for v in range(4): a(f"v_exp_f32 v{T+8+v}, v{T+8+v}")
        a("s_waitcnt lgkmcnt(0)")
        o = T + 18
        a(f"v_mul_f32 v{M+1}, v{T+8}, v{T+12}")
        a(f"v_mul_f32 v{o}, v{T+8}, v{T}")
        a(f"v_mul_f32 v{o+1}, v{T+8}, v{T+1}")
        for v in range(1, 4):
            a(f"v_fmac_f32 v{M+1}, v{T+8+v}, v{T+12+v}")
            a(f"v_fmac_f32 v{o}, v{T+8+v}, v{T+2*v}")
            a(f"v_fmac_f32 v{o+1}, v{T+8+v}, v{T+2*v+1}")
        self.store(f"buffer_store_dwordx2 {vr(o,2)}, v{aOst}, {WSR}, s{sOFF2} offen", 'grp')
        a("s_mov_b64 exec, 1")
        self.store(f"buffer_store_dwordx2 {vr(M,2)}, v{aAost}, {WSR}, s{sOFF} offen", 'grp')
        a("s_mov_b64 exec, -1")

    def xpublish(self, l, T):
        a = self.a
        a(f"ds_read_b128 {vr(T,4)}, v{aRr}")
        a(f"ds_read_b128 {vr(T+4,4)}, v{aRr} offset:256")
        a(f"s_mov_b32 s{sOFF}, {LB(l)}")
        a("s_waitcnt lgkmcnt(0)")
        for k in range(4): a(f"v_add_f32 v{T+k}, v{T+k}, v{T+4+k}")
        for k in range(4): a(f"v_add_f32_dpp v{T+k}, v{T+k}, v{T+k} quad_perm:[1,0,3,2] {DPPF}")
        for k in range(4): a(f"v_add_f32_dpp v{T+k}, v{T+k}, v{T+k} quad_perm:[2,3,0,1] {DPPF}")
        a(f"s_mov_b64 exec, s[{sM2}:{sM2+1}]")
        self.store(f"buffer_store_dwordx4 {vr(T,4)}, v{aXst}, {WSR}, s{sOFF} offen", 'dev')
        a("s_mov_b64 exec, -1")

    def xgather(self, lprev):
        a = self.a
        T = S1
        a(f"ds_read_u16 v{T+10}, v{aXl}")
        a(f"s_mov_b32 s{sOFF}, {LB(lprev)}")
        a("s_waitcnt lgkmcnt(0)")
        a(f"v_lshlrev_b32 v{T+10}, 16, v{T+10}")
        self.poll([f"buffer_load_dwordx4 {vr(T+4*e,4)}, v{aXg}, {WSR}, s{sOFF} offen offset:{e*1024} sc1" for e in range(2)],
                  list(range(T, T+8)), t0)
        for k in range(4):
            a(f"v_add_f32 v{T+k}, v{T+k}, v{T+4+k}")
        self.halves(T)
        a(f"v_permlane16_swap_b32 v{T}, v{T+1}")
        a(f"v_add_f32 v{T}, v{T}, v{T+1}")
        self.bf16r(T, T+1)
        a(f"v_add_f32 v{T}, v{T}, v{T+10}")
        a(f"v_cvt_pk_bf16_f32 v{T+9}, v{T}, v{T}")

    def stats(self, l):
        a = self.a
        T = S1
        a(f"v_mov_b32 v{t1}, {hex(f2u(-1.0/64))}")
        a(f"v_lshlrev_b32 v{T+8}, 16, v{T+9}")
        a(f"v_mov_b32 v{T}, v{T+8}")
        self.red64("v_add_f32", T, T+2)
        a(f"v_fma_f32 v{T+1}, v{T}, v{t1}, v{T+8}")
        a(f"v_mul_f32 v{T+1}, v{T+1}, v{T+1}")
        self.red64("v_add_f32", T+1, T+2)
        a(f"s_lshl_b32 s{sT0}, s{sS}, 3")
        a(f"s_lshl_b32 s{sT1}, s{sGI}, 7")
        a(f"s_add_u32 s{sT0}, s{sT0}, s{sT1}")
        a(f"s_add_u32 s{sT0}, s{sT0}, {AUXQ}")
        a(f"v_mov_b32 v{T+2}, s{sT0}")
        a(f"s_mov_b32 s{sOFF}, {LB(l)}")
        a("s_mov_b64 exec, 1")
        self.store(f"buffer_store_dwordx2 {vr(T,2)}, v{T+2}, {WSR}, s{sOFF} offen", 'grp')
        a("s_mov_b64 exec, -1")

    def prefetch(self, l):
        if not self.cfg.PREFETCH: return
        a = self.a
        a(f"s_mov_b32 s{sOFF}, {LB(l)}")
        a(f"s_mov_b32 s{sOFF2}, {LB(l)+OB}")
        a(f"buffer_load_dwordx2 {vr(DUM,2)}, v{aAq}, {WSR}, s{sOFF} offen sc1")
        for e in range(4): a(f"buffer_load_dwordx4 {vr(DUM,4)}, v{aG}, {WSR}, s{sOFF} offen offset:{e*1024} sc1")
        a(f"buffer_load_dwordx2 {vr(DUM,2)}, v{aAo}, {WSR}, s{sOFF} offen sc1")
        for e in range(4): a(f"buffer_load_dwordx4 {vr(DUM,4)}, v{aG}, {WSR}, s{sOFF2} offen offset:{e*1024} sc1")

    def C_layer(self, l):
        a = self.a
        a.c(f"======== layer {l} compute role")
        T = Z(5)
        a(f"s_mov_b32 s{sOFF}, {LB(l)+QB}")
        a("s_barrier")
        self.stamp(1 + 8*l)
        self.qproj(l, T, 0)
        self.stamp(2 + 8*l)
        self.kfrags()
        self.ones(T)
        a("s_waitcnt lgkmcnt(0)")
        a("s_barrier")
        self.stamp(3 + 8*l)
        self.attention(T)
        a("s_waitcnt lgkmcnt(0)")
        a("s_barrier")
        self.stamp(4 + 8*l)
        self.ogather_oproj(l, T)
        a("s_waitcnt lgkmcnt(0)")
        a("s_barrier")
        self.stamp(6 + 8*l)

    def M_layer(self, l, getcs, xw):
        a = self.a
        T = Z(5)
        a.c(f"======== layer {l} comm role")
        self.prefetch(l)
        if getcs:
            a(f"s_mov_b32 s{sOFF}, {LB(l%2)+CSB}")
            self.poll(self.bulk(T, sOFF), list(range(T, T+16)), t0)
            self.sum4(T)
            a(f"v_mov_b32 v{cs0}, v{T}")
            a(f"v_mov_b32 v{cs1}, v{T+1}")
        sk = a.newlabel("Lsk")
        a(f"s_cmp_lg_u32 s{sWV}, {xw}")
        a(f"s_cbranch_scc1 {sk}")
        self.xgather(l - 1)
        a(f"ds_write_b16 v{aXl}, v{S1+9}")
        a("s_waitcnt lgkmcnt(0)")
        a.label(sk)
        a("s_barrier")
        self.stamp(1 + 8*l)
        sk = a.newlabel("Lsk")
        a(f"s_cmp_lg_u32 s{sWV}, {xw}")
        a(f"s_cbranch_scc1 {sk}")
        self.stats(l)
        a.label(sk)
        a(f"s_mov_b32 s{sOFF}, {LB(l)}")
        st = T + 16
        self.poll([f"buffer_load_dwordx2 {vr(st,2)}, v{aAq}, {WSR}, s{sOFF} offen sc1"], [st, st+1], t0)
        mean = T + 18; d = T + 19; tmp = T + 20
        a(f"v_mov_b32 v{mean}, v{st}")
        self.red8("v_add_f32", mean)
        a(f"v_mul_f32 v{mean}, {hex(f2u(1.0/512))}, v{mean}")
        a(f"v_mul_f32 v{d}, {hex(f2u(1.0/64))}, v{st}")
        a(f"v_sub_f32 v{d}, v{d}, v{mean}")
        a(f"v_mul_f32 v{d}, v{d}, v{d}")
        a(f"v_mul_f32 v{d}, 0x42800000, v{d}")
        a(f"v_add_f32 v{d}, v{d}, v{st+1}")
        self.red8("v_add_f32", d)
        a(f"v_mul_f32 v{d}, {hex(f2u(1.0/512))}, v{d}")
        self.ln_den(mean, d, tmp)
        a(f"v_mul_f32 v{T+21}, v{mean}, v{cs0}")
        a(f"v_mul_f32 v{T+22}, v{mean}, v{cs1}")
        self.stamp(2 + 8*l)
        self.poll(self.bulk(T, sOFF), list(range(T, T+16)), t0)
        self.sum4(T)
        a(f"v_sub_f32 v{T}, v{T}, v{T+21}")
        a(f"v_sub_f32 v{T+1}, v{T+1}, v{T+22}")
        a(f"v_mul_f32 v{T}, v{T}, v{d}")
        a(f"v_mul_f32 v{T+1}, v{T+1}, v{d}")
        a(f"v_cvt_pk_bf16_f32 v{T}, v{T}, v{T+1}")
        a(f"ds_write_b32 v{aPw}, v{T}")
        a("s_waitcnt lgkmcnt(0)")
        a("s_barrier")
        self.stamp(3 + 8*l)
        a(f"s_mov_b32 s{sOFF2}, {LB(l)+OB}")
        a("s_barrier")
        self.stamp(4 + 8*l)
        self.combine(l, S1)
        self.stamp(5 + 8*l)
        a("s_barrier")
        self.stamp(6 + 8*l)
        sk = a.newlabel("Lsk")
        a(f"s_cmp_lg_u32 s{sWV}, 0")
        a(f"s_cbranch_scc1 {sk}")
        self.xpublish(l, S1)
        self.stamp(7 + 8*l)
        a.label(sk)

    def A_start_L0(self):
        a = self.a
        a.c("======== A waves: loads + layer 0")
        a(f"s_setprio {P_LA}")
        self.issue_wq(S1)
        a("s_barrier")
        self.issue_kv(S1+1, S1+2)
        self.issue_wo(S1+3)
        a(f"s_setprio {P_CRIT}")
        self.addrs()
        self.perm(Z(1), Z(0), 40)
        self.perm(Z(2), Z(1), 32)
        self.stamp(8)
        T = Z(2)
        self.flag_wait(0, 4)
        self.stamp(1)
        self.read_mode()
        a(f"s_mov_b32 s{sOFF}, {LB(0)+QB}")
        self.qproj(0, T, 128)
        self.stamp(2)
        self.cs_pass(0, T)
        a("s_waitcnt vmcnt(26)")
        self.stamp(16)
        self.kfrags()
        self.perm(Z(3), Z(2), 18)
        self.stamp(24)
        T = Z(3)
        self.ones(T)
        self.flag_wait(4, 1)
        self.stamp(3)
        self.attention(T)
        self.flag_add(8)
        a(f"s_mov_b32 s{sOFF}, {LB(0)}")
        a(f"s_mov_b32 s{sOFF2}, {LB(0)+OB}")
        self.flag_wait(8, 4)
        self.stamp(4)
        self.combine(0, S1)
        self.perm(Z(4), Z(3), 12)
        self.perm(Z(5), Z(4), 4)
        self.stamp(32)
        T = Z(5)
        self.ogather_oproj(0, T)
        self.flag_add(12)
        sk = a.newlabel("Lsk")
        a(f"s_cmp_lg_u32 s{sWV}, 0")
        a(f"s_cbranch_scc1 {sk}")
        self.flag_wait(12, 4)
        self.stamp(6)
        self.xpublish(0, S1)
        self.stamp(7)
        a.label(sk)

    def B_start(self):
        a = self.a
        T = Z(0)
        a.c("======== B waves: clean, handshake, L0 q gather (wave 0), loads")
        a(f"s_setprio {P_CRIT}")
        l0 = a.newlabel("Lb")
        a(f"""
        s_lshl_b32 s3, s{sB}, 8
        s_load_dword s{sTAG}, s[{sWSP}:{sWSP+1}], s3
        s_lshl_b32 s{sT0}, s{sB}, 10
        v_lshlrev_b32 v{T+8}, 4, v0
        v_add_u32 v{T+8}, s{sT0}, v{T+8}
        s_lshl_b32 s{sT1}, s{sS}, 7
        s_add_u32 s{sT0}, s{sT0}, s{sT1}
        v_lshl_add_u32 v{T+9}, v{t0}, 2, v{t1}
        v_lshlrev_b32 v{T+9}, 1, v{T+9}
        v_add_u32 v{T+9}, s{sT0}, v{T+9}
        s_cmp_lg_u32 s{sWV}, 0
        s_cbranch_scc1 {l0}
        global_load_dwordx4 {vr(T+12,4)}, v{T+8}, s[{sXP}:{sXP+1}]
        global_load_ushort v{T+16}, v{T+9}, s[{sXP}:{sXP+1}]
        """)
        a.label(l0)
        a(f"""
        v_mov_b32 v{T}, -1
        v_mov_b32 v{T+1}, -1
        v_mov_b32 v{T+2}, -1
        v_mov_b32 v{T+3}, -1
        s_add_u32 s{sOFF}, s{sWV}, 1
        s_lshl_b32 s{sOFF}, s{sOFF}, 21         ; LB(wv)
        s_lshl_b32 s{sT0}, s{sGI}, 14
        s_lshl_b32 s{sT1}, s{sS}, 9
        s_add_u32 s{sT0}, s{sT0}, s{sT1}
        v_lshrrev_b32 v{T+4}, 5, v0
        v_lshlrev_b32 v{T+4}, 12, v{T+4}
        v_and_b32 v{T+5}, 31, v0
        v_lshl_add_u32 v{T+4}, v{T+5}, 4, v{T+4}
        v_add_u32 v{T+4}, s{sT0}, v{T+4}
        v_add_u32 v{T+5}, 0x2000, v{T+4}
        """)
        for reg in (QB, OB, CSB):
            a(f"s_add_u32 s{sT1}, s{sOFF}, {reg}")
            a(f"buffer_store_dwordx4 {vr(T,4)}, v{T+4}, {WSR}, s{sT1} offen sc1")
            a(f"buffer_store_dwordx4 {vr(T,4)}, v{T+5}, {WSR}, s{sT1} offen sc1")
        a(f"""
        v_mov_b32 v{T+20}, 0
        v_mov_b32 v{T+21}, 0
        v_mov_b32 v{T+22}, 0
        v_mov_b32 v{T+23}, 0
        v_mov_b32 v{T+24}, {FLG}
        ds_write_b128 v{T+24}, {vr(T+20,4)}
        s_waitcnt lgkmcnt(0)
        s_barrier
        """)
        self.addrs()
        a(f"""
        s_mov_b64 exec, s[{sM2}:{sM2+1}]
        buffer_store_dwordx4 {vr(T,4)}, v{aXst}, {WSR}, s{sOFF} offen sc1
        s_mov_b64 exec, -1
        s_lshl_b32 s{sT0}, s{sGI}, 9
        s_lshl_b32 s{sT1}, s{sS}, 3
        s_add_u32 s{sT0}, s{sT0}, s{sT1}
        s_add_u32 s{sT0}, s{sT0}, {AUXO}
        v_lshlrev_b32 v{T+6}, 7, v0
        v_add_u32 v{T+6}, s{sT0}, v{T+6}
        s_lshl_b32 s{sT0}, s{sGI}, 7
        s_add_u32 s{sT0}, s{sT0}, s{sT1}
        s_add_u32 s{sT0}, s{sT0}, {AUXQ}
        v_mov_b32 v{T+7}, s{sT0}
        v_cmp_eq_u32 vcc, 4, v0
        v_cndmask_b32 v{T+6}, v{T+6}, v{T+7}, vcc
        s_mov_b64 exec, 31
        buffer_store_dwordx2 {vr(T,2)}, v{T+6}, {WSR}, s{sOFF} offen sc1
        s_mov_b64 exec, -1
        s_add_u32 s{sTAG}, s{sTAG}, 1
        s_cmp_lg_u32 s{sWV}, 0
        s_cbranch_scc1 L_b123
        """)
        a.c("---- wave 0: LN of input row")
        X = T + 32
        a("s_waitcnt vmcnt(8)")
        for i in range(4):
            a(f"v_lshlrev_b32 v{X+2*i}, 16, v{T+12+i}")
            a(f"v_and_b32 v{X+2*i+1}, 0xffff0000, v{T+12+i}")
        mean = T + 20; d = T + 21; tmp = T + 22
        a(f"v_add_f32 v{mean}, v{X}, v{X+1}")
        for i in range(2, 8): a(f"v_add_f32 v{mean}, v{mean}, v{X+i}")
        self.red64("v_add_f32", mean, tmp)
        a(f"v_mul_f32 v{mean}, {hex(f2u(1.0/512))}, v{mean}")
        for i in range(8): a(f"v_sub_f32 v{X+i}, v{X+i}, v{mean}")
        a(f"v_mul_f32 v{d}, v{X}, v{X}")
        for i in range(1, 8): a(f"v_fmac_f32 v{d}, v{X+i}, v{X+i}")
        self.red64("v_add_f32", d, tmp)
        a(f"v_mul_f32 v{d}, {hex(f2u(1.0/512))}, v{d}")
        self.ln_den(mean, d, tmp)
        a(f"ds_write_b16 v{aXl}, v{T+16}")
        a(f"v_lshlrev_b32 v{T+17}, 16, v{T+16}")
        a(f"v_sub_f32 v{T+17}, v{T+17}, v{mean}")
        self.bf16r(T+17, tmp)
        a(f"v_mul_f32 v{T+17}, v{T+17}, v{d}")
        a(f"v_cvt_pk_bf16_f32 v{T+17}, v{T+17}, v{T+17}")
        a(f"ds_write_b16 v{aXl}, v{T+17} offset:128")
        a.c("---- handshake")
        a(f"""
        s_lshl_b32 s{sT0}, s{sGI}, 3
        s_add_u32 s{sT0}, s{sT0}, s{sS}
        s_lshl_b32 s{sT0}, s{sT0}, 6
        s_add_u32 s{sT0}, s{sT0}, {HS}
        v_mov_b32 v{T+4}, s{sT0}
        v_mov_b32 v{T+10}, s{sTAG}
        v_mov_b32 v{T+11}, s{sXCC}
        v_and_b32 v{T+5}, 7, v0
        s_lshl_b32 s{sT0}, s{sGI}, 3
        v_add_u32 v{T+6}, s{sT0}, v{T+5}
        s_lshl_b32 s{sT0}, s{sB}, 6
        s_add_u32 s{sT0}, s{sT0}, s{sS}
        v_lshlrev_b32 v{T+7}, 3, v{T+5}
        v_add_u32 v{T+7}, s{sT0}, v{T+7}
        v_and_b32 v{T+5}, 8, v0
        v_cmp_eq_u32 vcc, 0, v{T+5}
        v_cndmask_b32 v{T+6}, v{T+7}, v{T+6}, vcc
        v_lshlrev_b32 v{T+6}, 6, v{T+6}
        v_add_u32 v{T+6}, {HS}, v{T+6}
        s_waitcnt vmcnt(0)
        """)
        self.stamp(8)
        a(f"""
        s_mov_b64 exec, 1
        buffer_store_dwordx2 {vr(T+10,2)}, v{T+4}, {WSR}, 0 offen sc1
        s_mov_b64 exec, -1
        s_mov_b32 s{sCNT}, 0
        s_setprio {P_POLL}
        L_hs:
        buffer_load_dwordx2 {vr(T+8,2)}, v{T+6}, {WSR}, 0 offen sc1
        s_waitcnt vmcnt(0)
        v_cmp_ne_u32 vcc, s{sTAG}, v{T+8}
        s_cbranch_vccz L_hsd
        s_add_u32 s{sCNT}, s{sCNT}, 1
        s_cmp_lt_u32 s{sCNT}, s{sLIM}
        s_cbranch_scc1 L_hs
        s_mov_b32 s{sLIM}, 0
        L_hsd:
        s_setprio {P_CRIT}
        v_cmp_ne_u32 vcc, s{sXCC}, v{T+9}
        s_and_b32 s{sT0}, vcc_lo, 0xff
        s_cmp_eq_u32 s{sT0}, 0
        s_cselect_b32 s{sT0}, 1, 0
        v_mov_b32 v{T}, s{sT0}
        v_mov_b32 v{T+1}, {MODE}
        ds_write_b32 v{T+1}, v{T}
        """)
        self.flag_add(0)
        self.stamp(1)
        a.c("---- L0 q gather, all 4 heads")
        loads = []
        for u in range(4):
            for e in range(4):
                loads.append(f"s_mov_b32 s{sOFF}, {LB(0)+QB+u*4096}") if e == 0 else None
                loads.append(f"buffer_load_dwordx4 {vr(T+16*u+4*e,4)}, v{aG}, {WSR}, s{sOFF} offen offset:{e*1024} sc1")
        self.poll(loads, list(range(T, T+64)), t0)
        for u in range(4):
            self.sum4(T + 16*u)
            a(f"v_cvt_pk_bf16_f32 v{T+16*u}, v{T+16*u}, v{T+16*u+1}")
            a(f"ds_write_b32 v{aPw}, v{T+16*u} offset:{u*256}")
        self.flag_add(4)
        self.stamp(3)
        a("s_branch L_bload")
        a.label("L_b123")
        a("s_waitcnt vmcnt(0)")
        self.flag_add(0)
        a.label("L_bload")
        self.lanes()
        self.addr_wq(S1)
        self.addr_kv(S1+1, S1+2)
        a(f"s_setprio {P_LB}")
        self.issue_wq(S1)
        self.issue_kv(S1+1, S1+2)
        a(f"s_setprio {P_CRIT}")
        self.stamp(4)

    def B_L1(self):
        a = self.a
        l = 1
        a.c("======== layer 1 compute role (first use of B)")
        self.perm(Z(1), Z(0), 24)
        self.perm(Z(2), Z(1), 16)
        T = Z(2)
        self.cs_pass(1, T)
        self.stamp(5)
        self.addr_wo(t2, t3)
        a(f"s_mov_b32 s{sOFF}, {LB(l)+QB}")
        a("s_barrier")
        self.stamp(1 + 8*l)
        self.read_mode()
        self.qproj(l, T, 0)
        self.stamp(2 + 8*l)
        a(f"s_setprio {P_LB}")
        self.issue_wo(t2)
        a(f"s_setprio {P_CRIT}")
        a("s_waitcnt vmcnt(26)")
        self.stamp(16)
        self.kfrags()
        self.perm(Z(3), Z(2), 18)
        self.stamp(24)
        T = Z(3)
        self.ones(T)
        a("s_waitcnt lgkmcnt(0)")
        a("s_barrier")
        self.stamp(3 + 8*l)
        self.attention(T)
        a("s_waitcnt lgkmcnt(0)")
        a("s_barrier")
        self.stamp(4 + 8*l)
        self.perm(Z(4), Z(3), 8)
        self.perm(Z(5), Z(4), 0)
        self.stamp(32)
        T = Z(5)
        self.ogather_oproj(l, T)
        a("s_waitcnt lgkmcnt(0)")
        a("s_barrier")
        self.stamp(6 + 8*l)

    def final(self):
        a = self.a
        a.c("======== final")
        a(f"s_cmp_lg_u32 s{sWV}, 0")
        a("s_cbranch_scc1 L_fin")
        a(f"s_cmp_lg_u32 s{sG}, 0")
        a("s_cbranch_scc1 L_fin")
        self.xgather(3)
        a(f"""
        s_lshl_b32 s{sT0}, s{sB}, 10
        s_lshl_b32 s{sT1}, s{sS}, 7
        s_add_u32 s{sT0}, s{sT0}, s{sT1}
        s_sub_u32 s{sT0}, s{sT0}, {XL}
        v_add_u32 v{S1+8}, s{sT0}, v{aXl}
        global_store_short v{S1+8}, v{S1+9}, s[{sOUTP}:{sOUTP+1}]
        s_cmp_lg_u32 s{sS}, 0
        s_cbranch_scc1 L_fin
        s_lshl_b32 s{sT0}, s{sB}, 8
        v_mov_b32 v{S1}, s{sT0}
        v_mov_b32 v{S1+1}, s{sTAG}
        s_mov_b64 exec, 1
        buffer_store_dword v{S1+1}, v{S1}, {WSR}, 0 offen sc1
        s_mov_b64 exec, -1
        """)

    def prof_out(self):
        if not self.cfg.PROF: return
        a = self.a
        self.stamp(33)
        a(f"""
        s_lshl_b32 s{sT0}, s2, 3
        s_lshl_b32 s{sT1}, s{sTY}, 2
        s_add_u32 s{sT0}, s{sT0}, s{sT1}
        s_add_u32 s{sT0}, s{sT0}, s{sWV}
        s_lshl_b32 s{sT0}, s{sT0}, 8
        s_add_u32 s{sT0}, s{sT0}, {PROFB}
        v_mov_b32 v{t0}, 0
        """)
        for i in range(34):
            a(f"v_writelane_b32 v{t0}, s{sPROF+i}, {i}")
        a(f"s_memrealtime s[98:99]")
        a("s_waitcnt lgkmcnt(0)")
        a(f"v_writelane_b32 v{t0}, s98, 34")
        a(f"v_writelane_b32 v{t0}, s{sXCC}, 35")
        a(f"v_writelane_b32 v{t0}, s{sMODE}, 36")
        a(f"v_lshlrev_b32 v{t1}, 2, v0")
        a(f"v_add_u32 v{t1}, s{sT0}, v{t1}")
        a(f"buffer_store_dword v{t0}, v{t1}, {WSR}, 0 offen")
        a("s_cmp_lg_u32 s2, 0")
        a("s_cbranch_scc1 L_end")
        a(f"s_cmp_lg_u32 s{sWV}, 0")
        a("s_cbranch_scc1 L_end")
        a("s_load_dwordx2 s[100:101], s[0:1], 88")
        a(f"v_mov_b32 v{t2}, 0")
        for i, idx in enumerate((8, 1, 3, 9, 17, 25, 30, 33)):
            a(f"s_sub_u32 s3, s{sPROF+idx}, s{sPROF}")
            a(f"v_writelane_b32 v{t2}, s3, {i}")
        a(f"s_lshl_b32 s3, s{sTY}, 5")
        a(f"v_lshlrev_b32 v{t1}, 2, v0")
        a(f"v_add_u32 v{t1}, s3, v{t1}")
        a("s_waitcnt lgkmcnt(0)")
        a("s_mov_b64 exec, 0xff")
        a(f"global_store_dword v{t1}, v{t2}, s[100:101]")

    def build(self):
        a = self.a
        if self.cfg.PROF:
            for i in range(34): a(f"s_mov_b32 s{sPROF+i}, 0")
        self.prologue()
        self.lanes()
        self.addr_wq(S1)
        self.addr_kv(S1+1, S1+2)
        self.addr_wo(S1+3, t2)
        self.srds()
        a(f"s_cmp_eq_u32 s{sTY}, 1")
        a("s_cbranch_scc1 L_B")
        self.A_start_L0()
        self.M_layer(1, True, 1)
        self.C_layer(2)
        self.M_layer(3, False, 0)
        a("s_branch L_fin")
        a.label("L_B")
        self.B_start()
        self.B_L1()
        self.M_layer(2, True, 0)
        self.C_layer(3)
        self.final()
        a.label("L_fin")
        self.prof_out()
        a.label("L_end")
        a("s_endpgm")
        lines = hazard.run(a.lines)
        return "\n".join(lines) + "\n"

def header():
    ref = open(f"cdna_kernels/{NAME}.s.ref").read().split("\n")
    out = []
    for l in ref:
        if l.startswith("; @launch"): break
        out.append(l)
    out.append(f"; @launch grid=(256,1,1) block=(512,1,1) lds={LDS_SIZE}")
    return "\n".join(out)

def generate(cfg):
    g = Gen(cfg)
    body = g.build()
    return kernel_wrap(NAME + "_kernel", body, 256, 102, 256, 104, header())

if __name__ == "__main__":
    ap = argparse.ArgumentParser()
    ap.add_argument("-o", default=f"cdna_kernels/{NAME}.s")
    ap.add_argument("--set", action="append", default=[])
    args = ap.parse_args()
    cfg = Cfg()
    for s in args.set:
        k, v = s.split("=", 1)
        setattr(cfg, k, eval(v))
    open(args.o, "w").write(generate(cfg))
    print("wrote", args.o)
```

```python
import sys, struct, argparse
sys.path.insert(0, 'gen')
from asmlib import *
import hazard

NAME = "interleave_layers__sliding_block_cached__sliding_block_cached__decode"
def f2u(x): return struct.unpack("<I", struct.pack("<f", x))[0]

class Cfg:
    FAST = True
    ROUND_S = True
    PROF = False
    LOADMOD = " nt"
    PREFETCH = True
    SPIN = 1 << 15
    DELAY = None

KL = 0
XL = 0x10000
QL = 0x10100
OL = 0x10500
ML = 0x10900
MODE = 0x10980
FLG = 0x10990
RED = 0x10A00
ORED = 0x11200
TRASH = 0x13200
LDS_SIZE = 0x13600
EPOCH = 0
HS = 0x1000
PROFB = 0x40000
LS = 0x200000
def LB(l): return LS * (l + 1)
QB, OB, CSB, AUXQ, AUXO, XB = 0, 0x80000, 0x100000, 0x180000, 0x190000, 0x1A0000
WS_SIZE = 268435456
sG, sB, sS, sWV, sTY, sGI, sMODE, sLIM = 4, 5, 6, 7, 8, 9, 10, 11
SWS = 12
SWQ, SK, SV, SWO = 16, 20, 24, 28
sPTR = 32
sWSP, sOUTP, sXP = 40, 42, 44
sSELLO, sSELHI = 46, 47
sMODD, sMHI = 48, 50
sOFF, sCNT, sTAG, sT0, sT1, sOFF2 = 52, 53, 54, 55, 56, 57
sM2 = 58
sSCALE, sLOG2E = 60, 61
sXCC = 62
sPROF = 64
(aXf, aQst, aKf, aQf, aOW, aMw, aLw, aG, aAo, aAq, aPw, aOf, aRw,
 aXg, aXl, aORr, aMLr, aOst, aAost, aRr, aXst, cs0, cs1) = range(1, 24)
t0, t1, t2, t3, t4, t5, t6, t7 = range(24, 32)
DUM = 28
S1 = 32
def Z(i): return 64 + 32 * i
WQ0, WQ1, VF, WO0, WO1 = Z(0), Z(1), Z(2), Z(3), Z(4)
DPPF = "row_mask:0xf bank_mask:0xf"
WSR = f"s[{SWS}:{SWS+3}]"
P_CRIT, P_POLL, P_LA, P_LB = 3, 2, 1, 0

class Gen:
    def __init__(self, cfg):
        self.a = Asm(); self.cfg = cfg

    def stamp(self, idx):
        a = self.a
        if self.cfg.DELAY and idx in (0, self.cfg.DELAY[0]):
            a("s_memrealtime s[98:99]")
            a("s_waitcnt lgkmcnt(0)")
            a(f"s_mov_b32 s{sPROF + (0 if idx == 0 else 1)}, s98")
        if not self.cfg.PROF: return
        a("s_memtime s[98:99]")
        a("s_waitcnt lgkmcnt(0)")
        a(f"s_mov_b32 s{sPROF+idx}, s98")

    def store(self, instr, scope):
        a = self.a
        if scope == 'dev' or not self.cfg.FAST:
            a(instr + " sc1"); return
        l1 = a.newlabel("Lst"); l2 = a.newlabel("Lst")
        a(f"s_cmp_eq_u32 s{sMODE}, 0")
        a(f"s_cbranch_scc1 {l1}")
        a(instr)
        a(f"s_branch {l2}")
        a.label(l1)
        a(instr + " sc1")
        a.label(l2)

    def poll(self, loads, regs, tmp):
        a = self.a
        L = a.newlabel("Lp"); D = a.newlabel("Lpd")
        a(f"s_mov_b32 s{sCNT}, 0")
        a(f"s_setprio {P_POLL}")
        a.label(L)
        for x in loads: a(x)
        a("s_waitcnt vmcnt(0)")
        rs = list(regs)
        if len(rs) == 2:
            a(f"v_max_u32 v{tmp}, v{rs[0]}, v{rs[1]}")
        else:
            a(f"v_max3_u32 v{tmp}, v{rs[0]}, v{rs[1]}, v{rs[2]}")
            rs = rs[3:]
            while len(rs) >= 2:
                a(f"v_max3_u32 v{tmp}, v{tmp}, v{rs[0]}, v{rs[1]}"); rs = rs[2:]
            if rs: a(f"v_max_u32 v{tmp}, v{tmp}, v{rs[0]}")
        a(f"v_cmp_eq_u32 vcc, -1, v{tmp}")
        a(f"s_cbranch_vccz {D}")
        a(f"s_add_u32 s{sCNT}, s{sCNT}, 1")
        a(f"s_cmp_lt_u32 s{sCNT}, s{sLIM}")
        a(f"s_cbranch_scc1 {L}")
        a(f"s_mov_b32 s{sLIM}, 0")
        a.label(D)
        a(f"s_setprio {P_CRIT}")

    def bulk(self, T, soff):
        return [f"buffer_load_dwordx4 {vr(T+4*e,4)}, v{aG}, {WSR}, s{soff} offen offset:{e*1024} sc1" for e in range(4)]

    def flag_add(self, off):
        a = self.a
        a(f"v_mov_b32 v{t0}, {FLG+off}")
        a(f"v_mov_b32 v{t1}, 1")
        a("s_mov_b64 exec, 1")
        a(f"ds_add_u32 v{t0}, v{t1}")
        a("s_mov_b64 exec, -1")
    def flag_wait(self, off, target):
        a = self.a
        L = a.newlabel("Lf"); D = a.newlabel("Lfd")
        a(f"v_mov_b32 v{t0}, {FLG+off}")
        a(f"s_mov_b32 s{sCNT}, 0")
        a.label(L)
        a(f"ds_read_b32 v{t1}, v{t0}")
        a("s_waitcnt lgkmcnt(0)")
        a(f"v_readfirstlane_b32 s{sT0}, v{t1}")
        a(f"s_cmp_ge_u32 s{sT0}, {target}")
        a(f"s_cbranch_scc1 {D}")
        a(f"s_add_u32 s{sCNT}, s{sCNT}, 1")
        a(f"s_cmp_lt_u32 s{sCNT}, 0x200000")
        a(f"s_cbranch_scc1 {L}")
        a.label(D)

    def bf16r(self, v, tmp):
        self.a(f"v_cvt_pk_bf16_f32 v{tmp}, v{v}, v{v}")
        self.a(f"v_lshlrev_b32 v{v}, 16, v{tmp}")
    def red8(self, op, v):
        a = self.a
        a(f"{op}_dpp v{v}, v{v}, v{v} quad_perm:[1,0,3,2] {DPPF}")
        a(f"{op}_dpp v{v}, v{v}, v{v} quad_perm:[2,3,0,1] {DPPF}")
        a(f"{op}_dpp v{v}, v{v}, v{v} row_half_mirror {DPPF}")
    def redrows(self, op, v, tmp):
        a = self.a
        a(f"v_mov_b32 v{tmp}, v{v}")
        a(f"v_permlane16_swap_b32 v{v}, v{tmp}")
        a(f"{op} v{v}, v{v}, v{tmp}")
        a(f"v_mov_b32 v{tmp}, v{v}")
        a(f"v_permlane32_swap_b32 v{v}, v{tmp}")
        a(f"{op} v{v}, v{v}, v{tmp}")
    def red64(self, op, v, tmp):
        self.red8(op, v)
        self.a(f"{op}_dpp v{v}, v{v}, v{v} row_mirror {DPPF}")
        self.redrows(op, v, tmp)
    def halves(self, acc):
        a = self.a
        a(f"v_permlane32_swap_b32 v{acc}, v{acc+2}")
        a(f"v_permlane32_swap_b32 v{acc+1}, v{acc+3}")
        a(f"v_add_f32 v{acc}, v{acc}, v{acc+2}")
        a(f"v_add_f32 v{acc+1}, v{acc+1}, v{acc+3}")
    def sum4(self, T):
        a = self.a
        for k in range(4): a(f"v_add_f32 v{T+k}, v{T+k}, v{T+4+k}")
        for k in range(4): a(f"v_add_f32 v{T+8+k}, v{T+8+k}, v{T+12+k}")
        for k in range(4): a(f"v_add_f32 v{T+k}, v{T+k}, v{T+8+k}")
        self.halves(T)
    def ln_den(self, mean, d, tmp):
        a = self.a
        self.bf16r(mean, tmp)
        self.bf16r(d, tmp)
        a(f"v_add_f32 v{d}, {hex(f2u(1e-5))}, v{d}")
        self.bf16r(d, tmp)
        a(f"v_sqrt_f32 v{d}, v{d}")
        self.bf16r(d, tmp)
        a(f"v_rcp_f32 v{d}, v{d}")

    def prologue(self):
        a = self.a
        a(f"""
        s_cmp_ge_u32 s2, 256
        s_cbranch_scc1 L_end
        v_lshrrev_b32 v{t0}, 6, v0
        s_load_dwordx2 s[{sWSP}:{sWSP+1}], s[0:1], 96
        v_readfirstlane_b32 s3, v{t0}
        s_load_dwordx2 s[{sXP}:{sXP+1}], s[0:1], 0
        s_load_dwordx2 s[{sOUTP}:{sOUTP+1}], s[0:1], 80
        s_lshr_b32 s{sTY}, s3, 2
        s_and_b32 s{sWV}, s3, 3
        s_mul_i32 s3, s{sTY}, 40
        s_add_u32 s3, s3, 8
        s_load_dwordx8 s[{sPTR}:{sPTR+7}], s[0:1], s3
        """)
        self.stamp(0)
        a(f"""
        v_and_b32 v0, 63, v0
        s_and_b32 s{sG}, s2, 7
        s_lshr_b32 s3, s2, 3
        s_and_b32 s{sS}, s3, 7
        s_lshr_b32 s{sB}, s3, 3
        s_lshl_b32 s{sGI}, s{sB}, 3
        s_add_u32 s{sGI}, s{sGI}, s{sG}
        s_mov_b32 s{sMODE}, 0
        s_mov_b32 s{sLIM}, {self.cfg.SPIN}
        s_mov_b32 s{sSELLO}, 0x05040100
        s_mov_b32 s{sSELHI}, 0x07060302
        s_mov_b32 s{sMODD}, 0xffff0000
        s_mov_b32 s{sMODD+1}, 0xffff0000
        s_mov_b32 s{sMHI}, 0
        s_mov_b32 s{sMHI+1}, -1
        s_mov_b32 s{sM2}, 0x11111111
        s_mov_b32 s{sM2+1}, 0x11111111
        s_mov_b32 s{sSCALE}, {hex(f2u(128 ** -0.5))}
        s_mov_b32 s{sLOG2E}, {hex(f2u(1.4426950408889634))}
        s_getreg_b32 s{sXCC}, hwreg(HW_REG_XCC_ID)
        """)

    def lanes(self):
        self.a(f"v_and_b32 v{t0}, 15, v0          ; lo4")
        self.a(f"v_lshrrev_b32 v{t1}, 4, v0       ; t")

    def addr_wq(self, r):
        self.a(f"""
        s_lshl_b32 s3, s{sS}, 19
        s_lshl_b32 s{sT0}, s{sG}, 10
        s_add_u32 s3, s3, s{sT0}
        s_lshl_b32 s{sT0}, s{sWV}, 8
        s_add_u32 s3, s3, s{sT0}
        v_lshlrev_b32 v{r}, 16, v{t1}
        v_lshl_add_u32 v{r}, v{t0}, 4, v{r}
        v_add_u32 v{r}, s3, v{r}
        """)
    def addr_kv(self, rk, rv):
        self.a(f"""
        s_lshl_b32 s3, s{sGI}, 12
        s_add_u32 s3, s3, 3072
        s_lshl_b32 s{sT0}, s{sS}, 7
        s_add_u32 s3, s3, s{sT0}
        s_lshl_b32 s{sT0}, s{sWV}, 5
        s_add_u32 s3, s3, s{sT0}
        s_lshl_b32 s3, s3, 8
        v_lshlrev_b32 v{rk}, 8, v{t0}
        v_lshl_add_u32 v{rk}, v{t1}, 4, v{rk}
        v_add_u32 v{rk}, s3, v{rk}
        v_lshlrev_b32 v{rv}, 10, v{t1}
        v_lshl_add_u32 v{rv}, v{t0}, 4, v{rv}
        v_add_u32 v{rv}, s3, v{rv}
        """)
    def addr_wo(self, r, tmp):
        self.a(f"""
        s_lshl_b32 s3, s{sG}, 19
        s_lshl_b32 s{sT0}, s{sWV}, 17
        s_add_u32 s3, s3, s{sT0}
        s_lshl_b32 s{sT0}, s{sS}, 7
        s_add_u32 s3, s3, s{sT0}
        v_lshrrev_b32 v{r}, 3, v0
        v_lshlrev_b32 v{r}, 13, v{r}
        v_and_b32 v{tmp}, 7, v0
        v_lshl_add_u32 v{r}, v{tmp}, 4, v{r}
        v_add_u32 v{r}, s3, v{r}
        """)

    def srds(self):
        a = self.a
        a("s_waitcnt lgkmcnt(0)")
        for srd, p, size in ((SWQ, sPTR+4, 4194304), (SWS, sWSP, WS_SIZE), (SK, sPTR, 33554432), (SV, sPTR+2, 33554432), (SWO, sPTR+6, 4194304)):
            a(f"s_mov_b32 s{srd}, s{p}")
            a(f"s_and_b32 s{srd+1}, s{p+1}, 0xffff")
            a(f"s_mov_b32 s{srd+2}, {size}")
            a(f"s_mov_b32 s{srd+3}, 0x20000")

    def issue_wq(self, r):
        a = self.a; lm = self.cfg.LOADMOD
        for blk in range(2):
            for e in range(8):
                a(f"s_mov_b32 s{sOFF}, {(32*blk+e)*8192}")
                a(f"buffer_load_dwordx4 {vr(Z(1+blk)+4*e,4)}, v{r}, s[{SWQ}:{SWQ+3}], s{sOFF} offen{lm}")
    def issue_kv(self, rk, rv):
        a = self.a; lm = self.cfg.LOADMOD
        a(f"s_lshl_b32 s3, s{sTY}, 15")
        a(f"s_lshl_b32 s{sT0}, s{sWV}, 13")
        a(f"s_add_u32 s3, s3, s{sT0}")
        for tile in range(2):
            for step in range(4):
                idx = tile*4+step
                a(f"s_add_u32 m0, s3, {idx*1024}")
                a(f"s_mov_b32 s{sOFF}, {tile*4096+step*64}")
                a(f"buffer_load_dwordx4 v{rk}, s[{SK}:{SK+3}], s{sOFF} offen{lm} lds")
        for e in range(8):
            row = e if e < 4 else 16 + e - 4
            a(f"s_mov_b32 s{sOFF}, {row*256}")
            a(f"buffer_load_dwordx4 {vr(Z(3)+4*e,4)}, v{rv}, s[{SV}:{SV+3}], s{sOFF} offen{lm}")
    def issue_wo(self, r):
        a = self.a; lm = self.cfg.LOADMOD
        for blk in range(2):
            for e in range(8):
                a(f"s_mov_b32 s{sOFF}, {(64*blk+e)*1024}")
                a(f"buffer_load_dwordx4 {vr(Z(4+blk)+4*e,4)}, v{r}, s[{SWO}:{SWO+3}], s{sOFF} offen{lm}")

    def addrs(self):
        a = self.a
        a(f"""
        v_lshrrev_b32 v{t2}, 5, v0          ; half
        v_and_b32 v{t3}, 31, v0             ; gi32
        v_lshrrev_b32 v{t4}, 3, v{t0}       ; lo4>>3
        v_lshlrev_b32 v{aXf}, 4, v{t1}
        v_add_u32 v{aXf}, {XL}, v{aXf}
        s_lshl_b32 s{sT0}, s{sGI}, 14
        s_lshl_b32 s{sT1}, s{sWV}, 12
        s_add_u32 s{sT0}, s{sT0}, s{sT1}
        s_lshl_b32 s{sT1}, s{sS}, 9
        s_add_u32 s{sT1}, s{sT1}, s{sT0}    ; + s*512
        v_and_b32 v{t5}, 1, v{t1}           ; t&1
        v_lshlrev_b32 v{aQst}, 5, v{t0}
        v_lshl_add_u32 v{aQst}, v{t5}, 4, v{aQst}
        v_add_u32 v{aQst}, s{sT1}, v{aQst}
        v_lshlrev_b32 v{aOst}, 5, v{t0}
        v_lshl_add_u32 v{aOst}, v{t1}, 3, v{aOst}
        v_add_u32 v{aOst}, s{sT1}, v{aOst}
        v_lshlrev_b32 v{aG}, 9, v{t2}
        v_lshl_add_u32 v{aG}, v{t3}, 4, v{aG}
        v_add_u32 v{aG}, s{sT0}, v{aG}
        s_lshl_b32 s{sT0}, s{sTY}, 15
        s_lshl_b32 s{sT1}, s{sWV}, 13
        s_add_u32 s{sT0}, s{sT0}, s{sT1}
        v_lshlrev_b32 v{aKf}, 4, v0
        v_add_u32 v{aKf}, s{sT0}, v{aKf}
        v_lshrrev_b32 v{t6}, 2, v{t0}       ; lo4>>2
        v_lshlrev_b32 v{aQf}, 8, v{t6}
        v_lshl_add_u32 v{aQf}, v{t1}, 4, v{aQf}
        v_add_u32 v{aQf}, {QL}, v{aQf}
        s_lshl_b32 s{sT0}, s{sWV}, 11
        s_add_u32 s{sT0}, s{sT0}, {ORED}
        v_lshlrev_b32 v{aOW}, 2, v0
        v_add_u32 v{aOW}, s{sT0}, v{aOW}
        s_lshl_b32 s{sT0}, s{sWV}, 2
        s_add_u32 s{sT0}, s{sT0}, {ML}
        v_lshlrev_b32 v{aMw}, 4, v{t6}
        v_add_u32 v{aMw}, s{sT0}, v{aMw}
        v_lshlrev_b32 v{aLw}, 4, v{t1}
        v_add_u32 v{aLw}, s{sT0}, v{aLw}
        v_add_u32 v{aLw}, 64, v{aLw}
        s_lshl_b32 s{sT0}, s{sGI}, 2
        s_add_u32 s{sT0}, s{sT0}, s{sWV}
        s_lshl_b32 s{sT0}, s{sT0}, 7
        s_add_u32 s{sT0}, s{sT0}, {AUXO}
        v_add_u32 v{aAo}, v0, v{t2}
        v_and_b32 v{aAo}, 7, v{aAo}
        v_lshlrev_b32 v{aAo}, 3, v{aAo}
        v_add_u32 v{aAo}, s{sT0}, v{aAo}
        s_lshl_b32 s{sT1}, s{sS}, 3
        s_add_u32 s{sT0}, s{sT0}, s{sT1}
        v_mov_b32 v{aAost}, s{sT0}
        s_lshl_b32 s{sT0}, s{sGI}, 7
        s_add_u32 s{sT0}, s{sT0}, {AUXQ}
        v_and_b32 v{aAq}, 7, v0
        v_lshlrev_b32 v{aAq}, 3, v{aAq}
        v_add_u32 v{aAq}, s{sT0}, v{aAq}
        s_lshl_b32 s{sT0}, s{sWV}, 8
        v_lshlrev_b32 v{aPw}, 3, v{t3}
        v_lshl_add_u32 v{aPw}, v{t2}, 2, v{aPw}
        v_add_u32 v{aPw}, s{sT0}, v{aPw}
        v_add_u32 v{aPw}, {QL}, v{aPw}
        v_and_b32 v{t7}, 1, v{t6}
        v_lshl_add_u32 v{aOf}, v{t1}, 1, v{t7}
        v_lshlrev_b32 v{aOf}, 4, v{aOf}
        v_add_u32 v{aOf}, s{sT0}, v{aOf}
        v_add_u32 v{aOf}, {OL}, v{aOf}
        s_lshl_b32 s{sT0}, s{sWV}, 9
        s_add_u32 s{sT0}, s{sT0}, {RED}
        v_lshlrev_b32 v{aRw}, 8, v{t4}
        v_and_b32 v{t7}, 7, v0
        v_lshl_add_u32 v{aRw}, v{t7}, 5, v{aRw}
        v_lshl_add_u32 v{aRw}, v{t2}, 4, v{aRw}
        v_add_u32 v{aRw}, s{sT0}, v{aRw}
        v_lshlrev_b32 v{t7}, 4, v0
        v_add_u32 v{t7}, {TRASH}, v{t7}
        v_cmp_eq_u32 vcc, v{t5}, v{t4}
        v_cndmask_b32 v{aRw}, v{t7}, v{aRw}, vcc
        s_lshl_b32 s{sT0}, s{sB}, 3
        s_add_u32 s{sT0}, s{sT0}, s{sS}
        s_lshl_b32 s{sT0}, s{sT0}, 11
        s_add_u32 s{sT0}, s{sT0}, {XB}
        v_lshlrev_b32 v{aXg}, 4, v0
        v_add_u32 v{aXg}, s{sT0}, v{aXg}
        s_lshl_b32 s{sT1}, s{sG}, 8
        s_add_u32 s{sT0}, s{sT0}, s{sT1}
        v_lshrrev_b32 v{t7}, 2, v0
        v_lshlrev_b32 v{aXst}, 4, v{t7}
        v_add_u32 v{aXst}, s{sT0}, v{aXst}
        v_and_b32 v{aRr}, 3, v0
        v_lshlrev_b32 v{aRr}, 9, v{aRr}
        v_lshl_add_u32 v{aRr}, v{t7}, 4, v{aRr}
        v_add_u32 v{aRr}, {RED}, v{aRr}
        v_lshl_add_u32 v{aXl}, v{t0}, 2, v{t1}
        v_lshlrev_b32 v{aXl}, 1, v{aXl}
        v_add_u32 v{aXl}, {XL}, v{aXl}
        s_lshl_b32 s{sT0}, s{sWV}, 6
        s_add_u32 s{sT0}, s{sT0}, {ORED}
        v_lshlrev_b32 v{aORr}, 9, v{t1}
        v_lshl_add_u32 v{aORr}, v{t0}, 2, v{aORr}
        v_add_u32 v{aORr}, s{sT0}, v{aORr}
        s_lshl_b32 s{sT0}, s{sWV}, 4
        s_add_u32 s{sT0}, s{sT0}, {ML}
        v_mov_b32 v{aMLr}, s{sT0}
        """)

    def perm(self, zs, zd, vm_after):
        a = self.a
        for p in range(4):
            a(f"s_waitcnt vmcnt({vm_after + 6 - 2*p})")
            for w in range(4):
                lo = zs + 8*p + w; hi = zs + 8*p + 4 + w
                a(f"v_perm_b32 v{zd+8*w+p}, v{hi}, v{lo}, s{sSELLO}")
                a(f"v_perm_b32 v{zd+8*w+4+p}, v{hi}, v{lo}, s{sSELHI}")

    def read_mode(self):
        a = self.a
        if not self.cfg.FAST: return
        a(f"v_mov_b32 v{t0}, {MODE}")
        a(f"ds_read_b32 v{t0}, v{t0}")
        a("s_waitcnt lgkmcnt(0)")
        a(f"v_readfirstlane_b32 s{sMODE}, v{t0}")

    def gemv(self, addr, off0, off1, W0, W1, T):
        a = self.a
        a(f"ds_read_b128 {vr(T,4)}, v{addr} offset:{off0}")
        a(f"ds_read_b128 {vr(T+4,4)}, v{addr} offset:{off1}")
        a("s_waitcnt lgkmcnt(1)")
        for j in range(8):
            a(f"v_mfma_f32_16x16x32_bf16 {vr(S1+4*j,4)}, {vr(T,4)}, {vr(W0+4*j,4)}, 0")
        a("s_waitcnt lgkmcnt(0)")
        for j in (0, 4, 1, 5, 2, 6, 3, 7):
            a(f"v_mfma_f32_16x16x32_bf16 {vr(S1+4*j,4)}, {vr(T+4,4)}, {vr(W1+4*j,4)}, {vr(S1+4*j,4)}")

    def qproj(self, l, T, xoff):
        a = self.a
        self.gemv(aXf, xoff, xoff + 64, WQ0, WQ1, T)
        for k in range(4):
            a(f"v_cndmask_b32 v{T+8+k}, v{S1+4*k}, v{S1+16+4*k}, s[{sMODD}:{sMODD+1}]")
        a("s_mov_b32 exec_hi, 0")
        self.store(f"buffer_store_dwordx4 {vr(T+8,4)}, v{aQst}, {WSR}, s{sOFF} offen", 'grp')
        a("s_mov_b32 exec_hi, -1")

    def cs_pass(self, ty, T):
        a = self.a
        for k in range(4): a(f"v_mov_b32 v{T+k}, 0x3f803f80")
        for j in range(8):
            a(f"v_mfma_f32_16x16x32_bf16 {vr(S1+4*j,4)}, {vr(T,4)}, {vr(WQ0+4*j,4)}, 0")
        for j in (0, 4, 1, 5, 2, 6, 3, 7):
            a(f"v_mfma_f32_16x16x32_bf16 {vr(S1+4*j,4)}, {vr(T,4)}, {vr(WQ1+4*j,4)}, {vr(S1+4*j,4)}")
        a(f"s_mov_b32 s{sOFF2}, {LB(ty)+CSB}")
        for k in range(4):
            a(f"v_cndmask_b32 v{T+12+k}, v{S1+4*k}, v{S1+16+4*k}, s[{sMODD}:{sMODD+1}]")
        a("s_mov_b32 exec_hi, 0")
        self.store(f"buffer_store_dwordx4 {vr(T+12,4)}, v{aQst}, {WSR}, s{sOFF2} offen", 'dev')
        a("s_mov_b32 exec_hi, -1")

    def kfrags(self):
        for i in range(8):
            self.a(f"ds_read_b128 {vr(S1+4*i,4)}, v{aKf} offset:{i*1024}")

    def attention(self, T):
        a = self.a; cfg = self.cfg
        for st in range(4):
            a(f"ds_read_b128 {vr(T+4*st,4)}, v{aQf} offset:{st*64}")
        for st in range(4):
            a(f"s_waitcnt lgkmcnt({3-st})")
            for tile in range(2):
                acc = T + 16 + 4*tile
                c = "0" if st == 0 else vr(acc, 4)
                a(f"v_mfma_f32_16x16x32_bf16 {vr(acc,4)}, {vr(S1+16*tile+4*st,4)}, {vr(T+4*st,4)}, {c}")
        sc = [T + 16 + i for i in range(8)]
        if cfg.ROUND_S:
            for i in range(4):
                a(f"v_cvt_pk_bf16_f32 v{T+i}, v{sc[2*i]}, v{sc[2*i+1]}")
            for i in range(4):
                a(f"v_lshlrev_b32 v{sc[2*i]}, 16, v{T+i}")
                a(f"v_and_b32 v{sc[2*i+1]}, 0xffff0000, v{T+i}")
            for i in range(8):
                a(f"v_mul_f32 v{sc[i]}, s{sSCALE}, v{sc[i]}")
            for i in range(4):
                a(f"v_cvt_pk_bf16_f32 v{T+i}, v{sc[2*i]}, v{sc[2*i+1]}")
            for i in range(4):
                a(f"v_lshlrev_b32 v{sc[2*i]}, 16, v{T+i}")
                a(f"v_and_b32 v{sc[2*i+1]}, 0xffff0000, v{T+i}")
            a(f"s_mov_b32 s{sT0}, s{sLOG2E}")
        else:
            a(f"s_mov_b32 s{sT0}, {hex(f2u(128 ** -0.5 * 1.4426950408889634))}")
        m = T + 4; tmp = T + 5
        a(f"v_max3_f32 v{m}, v{sc[0]}, v{sc[1]}, v{sc[2]}")
        a(f"v_max3_f32 v{tmp}, v{sc[3]}, v{sc[4]}, v{sc[5]}")
        a(f"v_max3_f32 v{m}, v{m}, v{sc[6]}, v{sc[7]}")
        a(f"v_max_f32 v{m}, v{m}, v{tmp}")
        self.redrows("v_max_f32", m, tmp)
        a(f"v_mul_f32 v{m}, s{sT0}, v{m}")
        for i in range(8):
            a(f"v_fma_f32 v{sc[i]}, v{sc[i]}, s{sT0}, -v{m}")
        a(f"ds_write_b32 v{aMw}, v{m}")
        for i in range(8):
            a(f"v_exp_f32 v{sc[i]}, v{sc[i]}")
        for i in range(4):
            a(f"v_cvt_pk_bf16_f32 v{T+24+i}, v{sc[2*i]}, v{sc[2*i+1]}")
        a(f"v_mfma_f32_16x16x32_bf16 {vr(T+8,4)}, {vr(T+24,4)}, {vr(T+28,4)}, 0")
        for j in range(8):
            a(f"v_mfma_f32_16x16x32_bf16 {vr(S1+4*j,4)}, {vr(T+24,4)}, {vr(VF+4*j,4)}, 0")
        a(f"ds_write_b32 v{aLw}, v{T+8}")
        for jp in range(4):
            a(f"ds_write2st64_b32 v{aOW}, v{S1+8*jp}, v{S1+8*jp+4} offset0:{2*jp} offset1:{2*jp+1}")

    def ones(self, T):
        for k in range(4): self.a(f"v_mov_b32 v{T+28+k}, 0x3f803f80")

    def ogather_oproj(self, l, T):
        a = self.a
        a(f"s_mov_b32 s{sOFF}, {LB(l)}")
        a(f"s_mov_b32 s{sOFF2}, {LB(l)+OB}")
        ml = T + 16
        self.poll([f"buffer_load_dwordx2 {vr(ml,2)}, v{aAo}, {WSR}, s{sOFF} offen sc1"], [ml, ml+1], t0)
        self.poll(self.bulk(T, sOFF2), list(range(T, T+16)), t0)
        self.stamp(5 + 8*l)
        mx = T + 18; w = T + 19; ls = T + 20
        a(f"v_mov_b32 v{mx}, v{ml}")
        self.red8("v_max_f32", mx)
        a(f"v_sub_f32 v{w}, v{ml}, v{mx}")
        a(f"v_exp_f32 v{w}, v{w}")
        a(f"v_mul_f32 v{ls}, v{w}, v{ml+1}")
        self.red8("v_add_f32", ls)
        a(f"v_rcp_f32 v{ls}, v{ls}")
        a(f"v_mul_f32 v{w}, v{w}, v{ls}")
        acc = T + 24
        for e in range(4):
            for k in range(4):
                op = "v_mul_f32_dpp" if e == 0 else "v_fmac_f32_dpp"
                a(f"{op} v{acc+k}, v{w}, v{T+4*e+k} row_newbcast:{2*e} {DPPF}")
        self.halves(acc)
        a(f"v_cvt_pk_bf16_f32 v{acc}, v{acc}, v{acc+1}")
        a(f"ds_write_b32 v{aPw}, v{acc} offset:{OL-QL}")
        a("s_waitcnt lgkmcnt(0)")
        self.gemv(aOf, 0, 128, WO0, WO1, T)
        for k in range(4):
            a(f"v_cndmask_b32 v{T+8+k}, v{S1+4*k}, v{S1+16+4*k}, s[{sMHI}:{sMHI+1}]")
        a(f"ds_write_b128 v{aRw}, {vr(T+8,4)}")

    def combine(self, l, T):
        a = self.a
        a(f"ds_read_b128 {vr(T+8,4)}, v{aMLr}")
        a(f"ds_read_b128 {vr(T+12,4)}, v{aMLr} offset:64")
        for v in range(4):
            a(f"ds_read2st64_b32 {vr(T+2*v,2)}, v{aORr} offset0:{8*v} offset1:{8*v+1}")
        M = T + 16
        a("s_waitcnt lgkmcnt(5)")
        a(f"v_max3_f32 v{M}, v{T+8}, v{T+9}, v{T+10}")
        a(f"v_max_f32 v{M}, v{M}, v{T+11}")
        for v in range(4): a(f"v_sub_f32 v{T+8+v}, v{T+8+v}, v{M}")
        for v in range(4): a(f"v_exp_f32 v{T+8+v}, v{T+8+v}")
        a("s_waitcnt lgkmcnt(0)")
        o = T + 18
        a(f"v_mul_f32 v{M+1}, v{T+8}, v{T+12}")
        a(f"v_mul_f32 v{o}, v{T+8}, v{T}")
        a(f"v_mul_f32 v{o+1}, v{T+8}, v{T+1}")
        for v in range(1, 4):
            a(f"v_fmac_f32 v{M+1}, v{T+8+v}, v{T+12+v}")
            a(f"v_fmac_f32 v{o}, v{T+8+v}, v{T+2*v}")
            a(f"v_fmac_f32 v{o+1}, v{T+8+v}, v{T+2*v+1}")
        self.store(f"buffer_store_dwordx2 {vr(o,2)}, v{aOst}, {WSR}, s{sOFF2} offen", 'grp')
        a("s_mov_b64 exec, 1")
        self.store(f"buffer_store_dwordx2 {vr(M,2)}, v{aAost}, {WSR}, s{sOFF} offen", 'grp')
        a("s_mov_b64 exec, -1")

    def xpublish(self, l, T):
        a = self.a
        a(f"ds_read_b128 {vr(T,4)}, v{aRr}")
        a(f"ds_read_b128 {vr(T+4,4)}, v{aRr} offset:256")
        a(f"s_mov_b32 s{sOFF}, {LB(l)}")
        a("s_waitcnt lgkmcnt(0)")
        for k in range(4): a(f"v_add_f32 v{T+k}, v{T+k}, v{T+4+k}")
        for k in range(4): a(f"v_add_f32_dpp v{T+k}, v{T+k}, v{T+k} quad_perm:[1,0,3,2] {DPPF}")
        for k in range(4): a(f"v_add_f32_dpp v{T+k}, v{T+k}, v{T+k} quad_perm:[2,3,0,1] {DPPF}")
        a(f"s_mov_b64 exec, s[{sM2}:{sM2+1}]")
        self.store(f"buffer_store_dwordx4 {vr(T,4)}, v{aXst}, {WSR}, s{sOFF} offen", 'dev')
        a("s_mov_b64 exec, -1")

    def xgather(self, lprev):
        a = self.a
        T = S1
        a(f"ds_read_u16 v{T+10}, v{aXl}")
        a(f"s_mov_b32 s{sOFF}, {LB(lprev)}")
        a("s_waitcnt lgkmcnt(0)")
        a(f"v_lshlrev_b32 v{T+10}, 16, v{T+10}")
        self.poll([f"buffer_load_dwordx4 {vr(T+4*e,4)}, v{aXg}, {WSR}, s{sOFF} offen offset:{e*1024} sc1" for e in range(2)],
                  list(range(T, T+8)), t0)
        for k in range(4):
            a(f"v_add_f32 v{T+k}, v{T+k}, v{T+4+k}")
        self.halves(T)
        a(f"v_permlane16_swap_b32 v{T}, v{T+1}")
        a(f"v_add_f32 v{T}, v{T}, v{T+1}")
        self.bf16r(T, T+1)
        a(f"v_add_f32 v{T}, v{T}, v{T+10}")
        a(f"v_cvt_pk_bf16_f32 v{T+9}, v{T}, v{T}")

    def stats(self, l):
        a = self.a
        T = S1
        a(f"v_mov_b32 v{t1}, {hex(f2u(-1.0/64))}")
        a(f"v_lshlrev_b32 v{T+8}, 16, v{T+9}")
        a(f"v_mov_b32 v{T}, v{T+8}")
        self.red64("v_add_f32", T, T+2)
        a(f"v_fma_f32 v{T+1}, v{T}, v{t1}, v{T+8}")
        a(f"v_mul_f32 v{T+1}, v{T+1}, v{T+1}")
        self.red64("v_add_f32", T+1, T+2)
        a(f"s_lshl_b32 s{sT0}, s{sS}, 3")
        a(f"s_lshl_b32 s{sT1}, s{sGI}, 7")
        a(f"s_add_u32 s{sT0}, s{sT0}, s{sT1}")
        a(f"s_add_u32 s{sT0}, s{sT0}, {AUXQ}")
        a(f"v_mov_b32 v{T+2}, s{sT0}")
        a(f"s_mov_b32 s{sOFF}, {LB(l)}")
        a("s_mov_b64 exec, 1")
        self.store(f"buffer_store_dwordx2 {vr(T,2)}, v{T+2}, {WSR}, s{sOFF} offen", 'grp')
        a("s_mov_b64 exec, -1")

    def prefetch(self, l):
        if not self.cfg.PREFETCH: return
        a = self.a
        a(f"s_mov_b32 s{sOFF}, {LB(l)}")
        a(f"s_mov_b32 s{sOFF2}, {LB(l)+OB}")
        a(f"buffer_load_dwordx2 {vr(DUM,2)}, v{aAq}, {WSR}, s{sOFF} offen sc1")
        for e in range(4): a(f"buffer_load_dwordx4 {vr(DUM,4)}, v{aG}, {WSR}, s{sOFF} offen offset:{e*1024} sc1")
        a(f"buffer_load_dwordx2 {vr(DUM,2)}, v{aAo}, {WSR}, s{sOFF} offen sc1")
        for e in range(4): a(f"buffer_load_dwordx4 {vr(DUM,4)}, v{aG}, {WSR}, s{sOFF2} offen offset:{e*1024} sc1")

    def C_layer(self, l):
        a = self.a
        a.c(f"======== layer {l} compute role")
        T = Z(5)
        a(f"s_mov_b32 s{sOFF}, {LB(l)+QB}")
        a("s_barrier")
        self.stamp(1 + 8*l)
        self.qproj(l, T, 0)
        self.stamp(2 + 8*l)
        self.kfrags()
        self.ones(T)
        a("s_waitcnt lgkmcnt(0)")
        a("s_barrier")
        self.stamp(3 + 8*l)
        self.attention(T)
        a("s_waitcnt lgkmcnt(0)")
        a("s_barrier")
        self.stamp(4 + 8*l)
        self.ogather_oproj(l, T)
        a("s_waitcnt lgkmcnt(0)")
        a("s_barrier")
        self.stamp(6 + 8*l)

    def M_layer(self, l, getcs, xw):
        a = self.a
        T = Z(5)
        a.c(f"======== layer {l} comm role")
        self.prefetch(l)
        if getcs:
            a(f"s_mov_b32 s{sOFF}, {LB(l%2)+CSB}")
            self.poll(self.bulk(T, sOFF), list(range(T, T+16)), t0)
            self.sum4(T)
            a(f"v_mov_b32 v{cs0}, v{T}")
            a(f"v_mov_b32 v{cs1}, v{T+1}")
        sk = a.newlabel("Lsk")
        a(f"s_cmp_lg_u32 s{sWV}, {xw}")
        a(f"s_cbranch_scc1 {sk}")
        self.xgather(l - 1)
        a(f"ds_write_b16 v{aXl}, v{S1+9}")
        a("s_waitcnt lgkmcnt(0)")
        a.label(sk)
        a("s_barrier")
        self.stamp(1 + 8*l)
        sk = a.newlabel("Lsk")
        a(f"s_cmp_lg_u32 s{sWV}, {xw}")
        a(f"s_cbranch_scc1 {sk}")
        self.stats(l)
        a.label(sk)
        a(f"s_mov_b32 s{sOFF}, {LB(l)}")
        st = T + 16
        self.poll([f"buffer_load_dwordx2 {vr(st,2)}, v{aAq}, {WSR}, s{sOFF} offen sc1"], [st, st+1], t0)
        mean = T + 18; d = T + 19; tmp = T + 20
        a(f"v_mov_b32 v{mean}, v{st}")
        self.red8("v_add_f32", mean)
        a(f"v_mul_f32 v{mean}, {hex(f2u(1.0/512))}, v{mean}")
        a(f"v_mul_f32 v{d}, {hex(f2u(1.0/64))}, v{st}")
        a(f"v_sub_f32 v{d}, v{d}, v{mean}")
        a(f"v_mul_f32 v{d}, v{d}, v{d}")
        a(f"v_mul_f32 v{d}, 0x42800000, v{d}")
        a(f"v_add_f32 v{d}, v{d}, v{st+1}")
        self.red8("v_add_f32", d)
        a(f"v_mul_f32 v{d}, {hex(f2u(1.0/512))}, v{d}")
        self.ln_den(mean, d, tmp)
        a(f"v_mul_f32 v{T+21}, v{mean}, v{cs0}")
        a(f"v_mul_f32 v{T+22}, v{mean}, v{cs1}")
        self.stamp(2 + 8*l)
        self.poll(self.bulk(T, sOFF), list(range(T, T+16)), t0)
        self.sum4(T)
        a(f"v_sub_f32 v{T}, v{T}, v{T+21}")
        a(f"v_sub_f32 v{T+1}, v{T+1}, v{T+22}")
        a(f"v_mul_f32 v{T}, v{T}, v{d}")
        a(f"v_mul_f32 v{T+1}, v{T+1}, v{d}")
        a(f"v_cvt_pk_bf16_f32 v{T}, v{T}, v{T+1}")
        a(f"ds_write_b32 v{aPw}, v{T}")
        a("s_waitcnt lgkmcnt(0)")
        a("s_barrier")
        self.stamp(3 + 8*l)
        a(f"s_mov_b32 s{sOFF2}, {LB(l)+OB}")
        a("s_barrier")
        self.stamp(4 + 8*l)
        self.combine(l, S1)
        self.stamp(5 + 8*l)
        a("s_barrier")
        self.stamp(6 + 8*l)
        sk = a.newlabel("Lsk")
        a(f"s_cmp_lg_u32 s{sWV}, 0")
        a(f"s_cbranch_scc1 {sk}")
        self.xpublish(l, S1)
        self.stamp(7 + 8*l)
        a.label(sk)

    def A_start_L0(self):
        a = self.a
        a.c("======== A waves: loads + layer 0")
        a(f"s_setprio {P_LA}")
        self.issue_wq(S1)
        a("s_barrier")
        self.issue_kv(S1+1, S1+2)
        self.issue_wo(S1+3)
        a(f"s_setprio {P_CRIT}")
        self.addrs()
        self.perm(Z(1), Z(0), 40)
        self.perm(Z(2), Z(1), 32)
        self.stamp(8)
        T = Z(2)
        self.flag_wait(0, 4)
        self.stamp(1)
        self.read_mode()
        a(f"s_mov_b32 s{sOFF}, {LB(0)+QB}")
        self.qproj(0, T, 128)
        self.stamp(2)
        self.cs_pass(0, T)
        a("s_waitcnt vmcnt(26)")
        self.stamp(16)
        self.kfrags()
        self.perm(Z(3), Z(2), 18)
        self.stamp(24)
        T = Z(3)
        self.ones(T)
        self.flag_wait(4, 1)
        self.stamp(3)
        self.attention(T)
        self.flag_add(8)
        a(f"s_mov_b32 s{sOFF}, {LB(0)}")
        a(f"s_mov_b32 s{sOFF2}, {LB(0)+OB}")
        self.flag_wait(8, 4)
        self.stamp(4)
        self.combine(0, S1)
        self.perm(Z(4), Z(3), 12)
        self.perm(Z(5), Z(4), 4)
        self.stamp(32)
        T = Z(5)
        self.ogather_oproj(0, T)
        self.flag_add(12)
        sk = a.newlabel("Lsk")
        a(f"s_cmp_lg_u32 s{sWV}, 0")
        a(f"s_cbranch_scc1 {sk}")
        self.flag_wait(12, 4)
        self.stamp(6)
        self.xpublish(0, S1)
        self.stamp(7)
        a.label(sk)

    def B_start(self):
        a = self.a
        T = Z(0)
        a.c("======== B waves: clean, handshake, L0 q gather (wave 0), loads")
        a(f"s_setprio {P_CRIT}")
        l0 = a.newlabel("Lb")
        a(f"""
        s_lshl_b32 s3, s{sB}, 8
        s_load_dword s{sTAG}, s[{sWSP}:{sWSP+1}], s3
        s_lshl_b32 s{sT0}, s{sB}, 10
        v_lshlrev_b32 v{T+8}, 4, v0
        v_add_u32 v{T+8}, s{sT0}, v{T+8}
        s_lshl_b32 s{sT1}, s{sS}, 7
        s_add_u32 s{sT0}, s{sT0}, s{sT1}
        v_lshl_add_u32 v{T+9}, v{t0}, 2, v{t1}
        v_lshlrev_b32 v{T+9}, 1, v{T+9}
        v_add_u32 v{T+9}, s{sT0}, v{T+9}
        s_cmp_lg_u32 s{sWV}, 0
        s_cbranch_scc1 {l0}
        global_load_dwordx4 {vr(T+12,4)}, v{T+8}, s[{sXP}:{sXP+1}]
        global_load_ushort v{T+16}, v{T+9}, s[{sXP}:{sXP+1}]
        """)
        a.label(l0)
        a(f"""
        v_mov_b32 v{T}, -1
        v_mov_b32 v{T+1}, -1
        v_mov_b32 v{T+2}, -1
        v_mov_b32 v{T+3}, -1
        s_add_u32 s{sOFF}, s{sWV}, 1
        s_lshl_b32 s{sOFF}, s{sOFF}, 21         ; LB(wv)
        s_lshl_b32 s{sT0}, s{sGI}, 14
        s_lshl_b32 s{sT1}, s{sS}, 9
        s_add_u32 s{sT0}, s{sT0}, s{sT1}
        v_lshrrev_b32 v{T+4}, 5, v0
        v_lshlrev_b32 v{T+4}, 12, v{T+4}
        v_and_b32 v{T+5}, 31, v0
        v_lshl_add_u32 v{T+4}, v{T+5}, 4, v{T+4}
        v_add_u32 v{T+4}, s{sT0}, v{T+4}
        v_add_u32 v{T+5}, 0x2000, v{T+4}
        """)
        for reg in (QB, OB, CSB):
            a(f"s_add_u32 s{sT1}, s{sOFF}, {reg}")
            a(f"buffer_store_dwordx4 {vr(T,4)}, v{T+4}, {WSR}, s{sT1} offen sc1")
            a(f"buffer_store_dwordx4 {vr(T,4)}, v{T+5}, {WSR}, s{sT1} offen sc1")
        a(f"""
        v_mov_b32 v{T+20}, 0
        v_mov_b32 v{T+21}, 0
        v_mov_b32 v{T+22}, 0
        v_mov_b32 v{T+23}, 0
        v_mov_b32 v{T+24}, {FLG}
        ds_write_b128 v{T+24}, {vr(T+20,4)}
        s_waitcnt lgkmcnt(0)
        s_barrier
        """)
        self.addrs()
        a(f"""
        s_mov_b64 exec, s[{sM2}:{sM2+1}]
        buffer_store_dwordx4 {vr(T,4)}, v{aXst}, {WSR}, s{sOFF} offen sc1
        s_mov_b64 exec, -1
        s_lshl_b32 s{sT0}, s{sGI}, 9
        s_lshl_b32 s{sT1}, s{sS}, 3
        s_add_u32 s{sT0}, s{sT0}, s{sT1}
        s_add_u32 s{sT0}, s{sT0}, {AUXO}
        v_lshlrev_b32 v{T+6}, 7, v0
        v_add_u32 v{T+6}, s{sT0}, v{T+6}
        s_lshl_b32 s{sT0}, s{sGI}, 7
        s_add_u32 s{sT0}, s{sT0}, s{sT1}
        s_add_u32 s{sT0}, s{sT0}, {AUXQ}
        v_mov_b32 v{T+7}, s{sT0}
        v_cmp_eq_u32 vcc, 4, v0
        v_cndmask_b32 v{T+6}, v{T+6}, v{T+7}, vcc
        s_mov_b64 exec, 31
        buffer_store_dwordx2 {vr(T,2)}, v{T+6}, {WSR}, s{sOFF} offen sc1
        s_mov_b64 exec, -1
        s_add_u32 s{sTAG}, s{sTAG}, 1
        s_cmp_lg_u32 s{sWV}, 0
        s_cbranch_scc1 L_b123
        """)
        a.c("---- wave 0: LN of input row")
        X = T + 32
        a("s_waitcnt vmcnt(8)")
        for i in range(4):
            a(f"v_lshlrev_b32 v{X+2*i}, 16, v{T+12+i}")
            a(f"v_and_b32 v{X+2*i+1}, 0xffff0000, v{T+12+i}")
        mean = T + 20; d = T + 21; tmp = T + 22
        a(f"v_add_f32 v{mean}, v{X}, v{X+1}")
        for i in range(2, 8): a(f"v_add_f32 v{mean}, v{mean}, v{X+i}")
        self.red64("v_add_f32", mean, tmp)
        a(f"v_mul_f32 v{mean}, {hex(f2u(1.0/512))}, v{mean}")
        for i in range(8): a(f"v_sub_f32 v{X+i}, v{X+i}, v{mean}")
        a(f"v_mul_f32 v{d}, v{X}, v{X}")
        for i in range(1, 8): a(f"v_fmac_f32 v{d}, v{X+i}, v{X+i}")
        self.red64("v_add_f32", d, tmp)
        a(f"v_mul_f32 v{d}, {hex(f2u(1.0/512))}, v{d}")
        self.ln_den(mean, d, tmp)
        a(f"ds_write_b16 v{aXl}, v{T+16}")
        a(f"v_lshlrev_b32 v{T+17}, 16, v{T+16}")
        a(f"v_sub_f32 v{T+17}, v{T+17}, v{mean}")
        self.bf16r(T+17, tmp)
        a(f"v_mul_f32 v{T+17}, v{T+17}, v{d}")
        a(f"v_cvt_pk_bf16_f32 v{T+17}, v{T+17}, v{T+17}")
        a(f"ds_write_b16 v{aXl}, v{T+17} offset:128")
        a.c("---- handshake")
        a(f"""
        s_lshl_b32 s{sT0}, s{sGI}, 3
        s_add_u32 s{sT0}, s{sT0}, s{sS}
        s_lshl_b32 s{sT0}, s{sT0}, 6
        s_add_u32 s{sT0}, s{sT0}, {HS}
        v_mov_b32 v{T+4}, s{sT0}
        v_mov_b32 v{T+10}, s{sTAG}
        v_mov_b32 v{T+11}, s{sXCC}
        v_and_b32 v{T+5}, 7, v0
        s_lshl_b32 s{sT0}, s{sGI}, 3
        v_add_u32 v{T+6}, s{sT0}, v{T+5}
        s_lshl_b32 s{sT0}, s{sB}, 6
        s_add_u32 s{sT0}, s{sT0}, s{sS}
        v_lshlrev_b32 v{T+7}, 3, v{T+5}
        v_add_u32 v{T+7}, s{sT0}, v{T+7}
        v_and_b32 v{T+5}, 8, v0
        v_cmp_eq_u32 vcc, 0, v{T+5}
        v_cndmask_b32 v{T+6}, v{T+7}, v{T+6}, vcc
        v_lshlrev_b32 v{T+6}, 6, v{T+6}
        v_add_u32 v{T+6}, {HS}, v{T+6}
        s_waitcnt vmcnt(0)
        """)
        self.stamp(8)
        a(f"""
        s_mov_b64 exec, 1
        buffer_store_dwordx2 {vr(T+10,2)}, v{T+4}, {WSR}, 0 offen sc1
        s_mov_b64 exec, -1
        s_mov_b32 s{sCNT}, 0
        s_setprio {P_POLL}
        L_hs:
        buffer_load_dwordx2 {vr(T+8,2)}, v{T+6}, {WSR}, 0 offen sc1
        s_waitcnt vmcnt(0)
        v_cmp_ne_u32 vcc, s{sTAG}, v{T+8}
        s_cbranch_vccz L_hsd
        s_add_u32 s{sCNT}, s{sCNT}, 1
        s_cmp_lt_u32 s{sCNT}, s{sLIM}
        s_cbranch_scc1 L_hs
        s_mov_b32 s{sLIM}, 0
        L_hsd:
        s_setprio {P_CRIT}
        v_cmp_ne_u32 vcc, s{sXCC}, v{T+9}
        s_and_b32 s{sT0}, vcc_lo, 0xff
        s_cmp_eq_u32 s{sT0}, 0
        s_cselect_b32 s{sT0}, 1, 0
        v_mov_b32 v{T}, s{sT0}
        v_mov_b32 v{T+1}, {MODE}
        ds_write_b32 v{T+1}, v{T}
        """)
        self.flag_add(0)
        self.stamp(1)
        a.c("---- L0 q gather, all 4 heads")
        loads = []
        for u in range(4):
            for e in range(4):
                loads.append(f"s_mov_b32 s{sOFF}, {LB(0)+QB+u*4096}") if e == 0 else None
                loads.append(f"buffer_load_dwordx4 {vr(T+16*u+4*e,4)}, v{aG}, {WSR}, s{sOFF} offen offset:{e*1024} sc1")
        self.poll(loads, list(range(T, T+64)), t0)
        for u in range(4):
            self.sum4(T + 16*u)
            a(f"v_cvt_pk_bf16_f32 v{T+16*u}, v{T+16*u}, v{T+16*u+1}")
            a(f"ds_write_b32 v{aPw}, v{T+16*u} offset:{u*256}")
        self.flag_add(4)
        self.stamp(3)
        a("s_branch L_bload")
        a.label("L_b123")
        a("s_waitcnt vmcnt(0)")
        self.flag_add(0)
        a.label("L_bload")
        self.lanes()
        self.addr_wq(S1)
        self.addr_kv(S1+1, S1+2)
        a(f"s_setprio {P_LB}")
        self.issue_wq(S1)
        self.issue_kv(S1+1, S1+2)
        a(f"s_setprio {P_CRIT}")
        self.stamp(4)

    def B_L1(self):
        a = self.a
        l = 1
        a.c("======== layer 1 compute role (first use of B)")
        self.perm(Z(1), Z(0), 24)
        self.perm(Z(2), Z(1), 16)
        T = Z(2)
        self.cs_pass(1, T)
        self.stamp(5)
        self.addr_wo(t2, t3)
        a(f"s_mov_b32 s{sOFF}, {LB(l)+QB}")
        a("s_barrier")
        self.stamp(1 + 8*l)
        self.read_mode()
        self.qproj(l, T, 0)
        self.stamp(2 + 8*l)
        a(f"s_setprio {P_LB}")
        self.issue_wo(t2)
        a(f"s_setprio {P_CRIT}")
        a("s_waitcnt vmcnt(26)")
        self.stamp(16)
        self.kfrags()
        self.perm(Z(3), Z(2), 18)
        self.stamp(24)
        T = Z(3)
        self.ones(T)
        a("s_waitcnt lgkmcnt(0)")
        a("s_barrier")
        self.stamp(3 + 8*l)
        self.attention(T)
        a("s_waitcnt lgkmcnt(0)")
        a("s_barrier")
        self.stamp(4 + 8*l)
        self.perm(Z(4), Z(3), 8)
        self.perm(Z(5), Z(4), 0)
        self.stamp(32)
        T = Z(5)
        self.ogather_oproj(l, T)
        a("s_waitcnt lgkmcnt(0)")
        a("s_barrier")
        self.stamp(6 + 8*l)

    def final(self):
        a = self.a
        a.c("======== final")
        a(f"s_cmp_lg_u32 s{sWV}, 0")
        a("s_cbranch_scc1 L_fin")
        a(f"s_cmp_lg_u32 s{sG}, 0")
        a("s_cbranch_scc1 L_fin")
        self.xgather(3)
        a(f"""
        s_lshl_b32 s{sT0}, s{sB}, 10
        s_lshl_b32 s{sT1}, s{sS}, 7
        s_add_u32 s{sT0}, s{sT0}, s{sT1}
        s_sub_u32 s{sT0}, s{sT0}, {XL}
        v_add_u32 v{S1+8}, s{sT0}, v{aXl}
        global_store_short v{S1+8}, v{S1+9}, s[{sOUTP}:{sOUTP+1}]
        s_cmp_lg_u32 s{sS}, 0
        s_cbranch_scc1 L_fin
        s_lshl_b32 s{sT0}, s{sB}, 8
        v_mov_b32 v{S1}, s{sT0}
        v_mov_b32 v{S1+1}, s{sTAG}
        s_mov_b64 exec, 1
        buffer_store_dword v{S1+1}, v{S1}, {WSR}, 0 offen sc1
        s_mov_b64 exec, -1
        """)

    def prof_out(self):
        a = self.a
        if self.cfg.DELAY:
            self.stamp(33)
            a(f"""
            s_cmp_lg_u32 s2, 0
            s_cbranch_scc1 L_end
            s_cmp_lg_u32 s{sWV}, 0
            s_cbranch_scc1 L_end
            s_cmp_lg_u32 s{sTY}, 1
            s_cbranch_scc1 L_end
            s_sub_u32 s{sT0}, s{sPROF+1}, s{sPROF}
            s_mul_i32 s{sT0}, s{sT0}, {self.cfg.DELAY[1]}
            s_min_u32 s{sT0}, s{sT0}, 100000
            L_delay:
            s_memrealtime s[98:99]
            s_waitcnt lgkmcnt(0)
            s_sub_u32 s{sT1}, s98, s{sPROF}
            s_cmp_lt_u32 s{sT1}, s{sT0}
            s_cbranch_scc1 L_delay
            """)
        if not self.cfg.PROF: return
        self.stamp(33)
        a(f"""
        s_lshl_b32 s{sT0}, s2, 3
        s_lshl_b32 s{sT1}, s{sTY}, 2
        s_add_u32 s{sT0}, s{sT0}, s{sT1}
        s_add_u32 s{sT0}, s{sT0}, s{sWV}
        s_lshl_b32 s{sT0}, s{sT0}, 8
        s_add_u32 s{sT0}, s{sT0}, {PROFB}
        v_mov_b32 v{t0}, 0
        """)
        for i in range(34):
            a(f"v_writelane_b32 v{t0}, s{sPROF+i}, {i}")
        a(f"s_memrealtime s[98:99]")
        a("s_waitcnt lgkmcnt(0)")
        a(f"v_writelane_b32 v{t0}, s98, 34")
        a(f"v_writelane_b32 v{t0}, s{sXCC}, 35")
        a(f"v_writelane_b32 v{t0}, s{sMODE}, 36")
        a(f"v_lshlrev_b32 v{t1}, 2, v0")
        a(f"v_add_u32 v{t1}, s{sT0}, v{t1}")
        a(f"buffer_store_dword v{t0}, v{t1}, {WSR}, 0 offen")
        a("s_cmp_lg_u32 s2, 0")
        a("s_cbranch_scc1 L_end")
        a(f"s_cmp_lg_u32 s{sWV}, 0")
        a("s_cbranch_scc1 L_end")
        a("s_load_dwordx2 s[100:101], s[0:1], 88")
        a(f"v_mov_b32 v{t2}, 0")
        for i, idx in enumerate((8, 1, 3, 9, 17, 25, 30, 33)):
            a(f"s_sub_u32 s3, s{sPROF+idx}, s{sPROF}")
            a(f"v_writelane_b32 v{t2}, s3, {i}")
        a(f"s_lshl_b32 s3, s{sTY}, 5")
        a(f"v_lshlrev_b32 v{t1}, 2, v0")
        a(f"v_add_u32 v{t1}, s3, v{t1}")
        a("s_waitcnt lgkmcnt(0)")
        a("s_mov_b64 exec, 0xff")
        a(f"global_store_dword v{t1}, v{t2}, s[100:101]")

    def build(self):
        a = self.a
        if self.cfg.PROF:
            for i in range(34): a(f"s_mov_b32 s{sPROF+i}, 0")
        self.prologue()
        self.lanes()
        self.addr_wq(S1)
        self.addr_kv(S1+1, S1+2)
        self.addr_wo(S1+3, t2)
        self.srds()
        a(f"s_cmp_eq_u32 s{sTY}, 1")
        a("s_cbranch_scc1 L_B")
        self.A_start_L0()
        self.M_layer(1, True, 1)
        self.C_layer(2)
        self.M_layer(3, False, 0)
        a("s_branch L_fin")
        a.label("L_B")
        self.B_start()
        self.B_L1()
        self.M_layer(2, True, 0)
        self.C_layer(3)
        self.final()
        a.label("L_fin")
        self.prof_out()
        a.label("L_end")
        a("s_endpgm")
        lines = hazard.run(a.lines)
        return "\n".join(lines) + "\n"

def header():
    ref = open(f"cdna_kernels/{NAME}.s.ref").read().split("\n")
    out = []
    for l in ref:
        if l.startswith("; @launch"): break
        out.append(l)
    out.append(f"; @launch grid=(256,1,1) block=(512,1,1) lds={LDS_SIZE}")
    return "\n".join(out)

def generate(cfg):
    g = Gen(cfg)
    body = g.build()
    return kernel_wrap(NAME + "_kernel", body, 256, 102, 256, 104, header())

if __name__ == "__main__":
    ap = argparse.ArgumentParser()
    ap.add_argument("-o", default=f"cdna_kernels/{NAME}.s")
    ap.add_argument("--set", action="append", default=[])
    args = ap.parse_args()
    cfg = Cfg()
    for s in args.set:
        k, v = s.split("=", 1)
        setattr(cfg, k, eval(v))
    open(args.o, "w").write(generate(cfg))
    print("wrote", args.o)
```
